```python
import torch

def _softmax(x, axis=-1):
    return torch.softmax(x, dim=axis)
def _gelu(x):
    return torch.nn.functional.gelu(x, approximate="tanh")
def _silu(x):
    return torch.nn.functional.silu(x)
def _sigmoid(x):
    return torch.sigmoid(x)
def _layernorm(x, axis=-1, eps=1e-5):
    m = x.mean(dim=axis, keepdim=True)
    v = x.var(dim=axis, keepdim=True, unbiased=False)
    return (x - m) / torch.sqrt(v + eps)
def _scatter_add(tgt, idx, src, axis=0):
    return tgt.clone().index_add_(axis, idx, src)
def _segment_sum(src, seg, n):
    out = torch.zeros((n,) + src.shape[1:], dtype=src.dtype)
    return out.index_add_(0, seg, src)
def _pad(x, pw):
    flat = tuple(v for pair in reversed(pw) for v in pair)
    return torch.nn.functional.pad(x, flat)

kernel_name = 'sequential_preLN__mha_block__glu_gated_glu__prompt'

def setup_inputs():

    _w = (lambda a: (lambda t: t.to(torch.bfloat16) if t.is_floating_point() else t)(torch.as_tensor(a)))
    def _A_setup():
        B, S, D, H = 1, 2048, 1024, 32
        return {
            "x": _w((lambda *s: torch.randn(*s, dtype=torch.bfloat16) * 0.05)(B, S, D)),
            "wqkv": _w((lambda *s: torch.randn(*s, dtype=torch.bfloat16) * 0.05)(D, 3 * D)),
            "wo": _w((lambda *s: torch.randn(*s, dtype=torch.bfloat16) * 0.05)(D, D)),
        }
    _A_in = _A_setup()

    def _B_setup():
        B, S, D, F = 1, 2048, 1024, 3584
        return {
            "x": _w((lambda *s: torch.randn(*s, dtype=torch.bfloat16) * 0.05)(B, S, D)),
            "w_gate": _w((lambda *s: torch.randn(*s, dtype=torch.bfloat16) * 0.05)(D, F)),
            "w_up": _w((lambda *s: torch.randn(*s, dtype=torch.bfloat16) * 0.05)(D, F)),
            "w_down": _w((lambda *s: torch.randn(*s, dtype=torch.bfloat16) * 0.05)(F, D)),
        }
    _B_in = _B_setup()

    return {
        "A_x": _A_in["x"],
        "A_wqkv": _A_in["wqkv"],
        "A_wo": _A_in["wo"],
        "B_x": _B_in["x"],
        "B_w_gate": _B_in["w_gate"],
        "B_w_up": _B_in["w_up"],
        "B_w_down": _B_in["w_down"],
    }

def reference(A_x, A_wqkv, A_wo, B_x, B_w_gate, B_w_up, B_w_down):
    def _A_ref(x, wqkv, wo):
        B, S, D = x.shape
        H = 32
        Dh = D // H
        qkv = (lambda x, *d: x.permute(*d))((x @ wqkv).reshape(B, S, 3, H, Dh), 2, 0, 3, 1, 4)
        q, k, v = qkv[0], qkv[1], qkv[2]
        scores = torch.einsum("bhqd,bhkd->bhqk", q, k) * (Dh ** -0.5)
        p = _softmax(scores, axis=-1)
        o = torch.einsum("bhqk,bhkd->bhqd", p, v)
        return (lambda x, *d: x.permute(*d))(o, 0, 2, 1, 3).reshape(B, S, D) @ wo

    def _B_ref(x, w_gate, w_up, w_down):
        g = torch.einsum("bsd,df->bsf", x, w_gate)
        u = torch.einsum("bsd,df->bsf", x, w_up)
        h = _sigmoid(g) * u
        return torch.einsum("bsf,fd->bsd", h, w_down)

    x = A_x
    h = x + _A_ref(_layernorm(x, axis=-1), A_wqkv, A_wo)
    h2 = h + _B_ref(_layernorm(h, axis=-1), B_w_gate, B_w_up, B_w_down)
    return h2
```

```python
from gen import *


def gen_attn(name):
    RL = 4
    SLOT = 16384
    k = K(name, 256, 512, RL * SLOT, 128)
    S0, S1, O, NEGM, P, LL, Q, KF, VF, SEL = 16, 32, 48, 64, 80, 88, 92, 100, 108, 116
    SB = [S0, S1]
    V_LANE, V_DO, V_RB, V_CUR, V_NXT, T = 1, 2, 3, 4, 5, 6
    S_WS, S_KS, S_VS, S_QS, S_OS = 4, 8, 12, 16, 20
    S_WAVE, S_HEAD, S_QT, S_OFF, S_WSLOT, S_RSLOT, S_CNT, S_WB, S_T = 24, 25, 26, 27, 28, 29, 30, 31, 32
    k(f"""
    s_load_dwordx2 s[{S_WS}:{S_WS + 1}], s[0:1], {KA_WS}
    s_cmp_ge_u32 s2, 256
    s_cbranch_scc1 {k.L('done')}
    v_lshrrev_b32 v{T}, 6, v0
    v_and_b32 v{V_LANE}, 63, v0
    v_readfirstlane_b32 s{S_WAVE}, v{T}
    s_and_b32 s{S_T}, s2, 7
    s_lshr_b32 s{S_T + 1}, s2, 3
    s_lshl_b32 s{S_HEAD}, s{S_T}, 2
    s_lshr_b32 s{S_T + 2}, s{S_T + 1}, 3
    s_add_u32 s{S_HEAD}, s{S_HEAD}, s{S_T + 2}
    s_and_b32 s{S_QT}, s{S_T + 1}, 7
    s_lshl_b32 s{S_QT}, s{S_QT}, 3
    s_add_u32 s{S_QT}, s{S_QT}, s{S_WAVE}             ; q tile
    v_lshlrev_b32 v{V_RB}, 4, v{V_LANE}               ; lane*16
    v_lshlrev_b32 v{V_DO}, 4, v0
    s_lshl_b32 s{S_WB}, s{S_WAVE}, 10
    s_lshl_b32 s{S_T + 3}, s{S_HEAD}, 17
    s_waitcnt lgkmcnt(0)
    """)
    srd(k, S_QS, S_WS, WS_Q, 131072, off_sgpr=S_T + 3)
    srd(k, S_KS, S_WS, WS_K, 131072, off_sgpr=S_T + 3)
    srd(k, S_VS, S_WS, WS_V, 131072, off_sgpr=S_T + 3)
    k(f"s_lshl_b32 s{S_T + 4}, s{S_QT}, 11")
    k(f"buffer_load_dwordx4 v[{Q}:{Q + 3}], v{V_RB}, s[{S_QS}:{S_QS + 3}], s{S_T + 4} offen")
    k(f"buffer_load_dwordx4 v[{Q + 4}:{Q + 7}], v{V_RB}, s[{S_QS}:{S_QS + 3}], s{S_T + 4} offen offset:1024")
    for s in range(RL - 1):
        k(f"s_mov_b32 s{S_OFF}, {s * 8192}")
        k(f"s_add_u32 m0, s{S_WB}, {s * SLOT}")
        k("s_nop 0")
        k(f"buffer_load_dwordx4 v{V_DO}, s[{S_KS}:{S_KS + 3}], s{S_OFF} offen lds")
        k(f"s_add_u32 m0, s{S_WB}, {s * SLOT + 8192}")
        k("s_nop 0")
        k(f"buffer_load_dwordx4 v{V_DO}, s[{S_VS}:{S_VS + 3}], s{S_OFF} offen lds")
    k(f"""
    v_lshrrev_b32 v{T}, 4, v{V_LANE}
    v_lshrrev_b32 v{T + 1}, 2, v{V_LANE}
    v_xor_b32 v{T}, v{T}, v{T + 1}
    v_and_b32 v{T}, 1, v{T}
    v_mov_b32 v{T + 1}, 0x3f803f80
    v_cmp_eq_u32 vcc, 0, v{T}
    s_nop 1
    v_cndmask_b32 v{SEL}, 0, v{T + 1}, vcc
    v_mov_b32 v{SEL + 1}, v{SEL}
    v_mov_b32 v{SEL + 2}, v{SEL}
    v_mov_b32 v{SEL + 3}, v{SEL}
    """)
    for r in range(16):
        k(f"v_mov_b32 v{O + r}, 0")
    for r in range(4):
        k(f"v_mov_b32 v{LL + r}, 0")
    for r in range(8):
        k(f"v_mov_b32 v{P + r}, 0")
    k(f"s_mov_b32 s{S_OFF}, {(RL - 1) * 8192}")
    k(f"s_mov_b32 s{S_WSLOT}, {(RL - 1) * SLOT}")
    k(f"s_mov_b32 s{S_RSLOT}, 0")
    k(f"s_mov_b32 s{S_CNT}, 16")
    k(f"v_mov_b32 v{V_CUR}, v{V_RB}")
    k(f"s_waitcnt vmcnt({2 * (RL - 2)})")
    k("s_barrier")
    k(f"ds_read_b128 v[{KF}:{KF + 3}], v{V_CUR}")
    k(f"ds_read_b128 v[{KF + 4}:{KF + 7}], v{V_CUR} offset:1024")
    k("s_waitcnt lgkmcnt(0)")
    M32 = "v_mfma_f32_32x32x16_bf16"
    M16 = "v_mfma_f32_16x16x32_bf16"
    k(f"{M32} {vr(S0, 16)}, {vr(KF, 4)}, {vr(Q, 4)}, 0")
    k(f"{M32} {vr(S0, 16)}, {vr(KF + 4, 4)}, {vr(Q + 4, 4)}, {vr(S0, 16)}")
    k("s_nop 7")
    k("s_nop 7")
    k(f"v_max3_f32 v{T}, v{S0}, v{S0 + 1}, v{S0 + 2}")
    for r in range(3, 15, 2):
        k(f"v_max3_f32 v{T}, v{T}, v{S0 + r}, v{S0 + r + 1}")
    k(f"v_max_f32 v{T}, v{T}, v{S0 + 15}")
    k(f"v_mov_b32 v{T + 1}, v{T}")
    k("s_nop 1")
    k(f"v_permlane32_swap_b32 v{T}, v{T + 1}")
    k("s_nop 1")
    k(f"v_max_f32 v{T}, v{T}, v{T + 1}")
    for r in range(16):
        k(f"v_sub_f32 v{NEGM + r}, 0, v{T}")
    k("s_nop 1")
    k(f"{M32} {vr(S0, 16)}, {vr(KF, 4)}, {vr(Q, 4)}, {vr(NEGM, 16)}")
    k(f"{M32} {vr(S0, 16)}, {vr(KF + 4, 4)}, {vr(Q + 4, 4)}, {vr(S0, 16)}")
    k(f"ds_read_b128 v[{KF}:{KF + 3}], v{V_CUR} offset:2048")
    k(f"ds_read_b128 v[{VF + 4}:{VF + 7}], v{V_CUR} offset:{8192 + 1024}")
    k(f"ds_read_b128 v[{KF + 4}:{KF + 7}], v{V_CUR} offset:{2048 + 1024}")
    k(f"ds_read_b128 v[{VF}:{VF + 3}], v{V_CUR} offset:8192")
    k("s_nop 7")
    k("s_nop 3")

    def ex(b, r0, n):
        for r in range(r0, r0 + n):
            k(f"v_exp_f32 v{b + r}, v{b + r}")

    def cv(b, q0, n):
        for q in range(q0, q0 + n):
            k(f"v_cvt_pk_bf16_f32 v{P + q}, v{b + 2 * q}, v{b + 2 * q + 1}")

    k.label("loop")
    for tt in range(4):
        cb, nb = SB[tt % 2], SB[(tt + 1) % 2]
        if tt == 2:
            k(f"s_add_u32 s{S_RSLOT}, s{S_RSLOT}, {SLOT}")
            k(f"s_and_b32 s{S_RSLOT}, s{S_RSLOT}, {RL * SLOT - 1}")
            k(f"v_add_u32 v{V_NXT}, s{S_RSLOT}, v{V_RB}")
            k(f"s_add_u32 m0, s{S_WSLOT}, s{S_WB}")
            k(f"s_waitcnt vmcnt({2 * (RL - 3)})")
            k("s_barrier")
            k(f"buffer_load_dwordx4 v{V_DO}, s[{S_KS}:{S_KS + 3}], s{S_OFF} offen lds")
            k(f"s_add_u32 m0, m0, 8192")
            k(f"s_add_u32 s{S_WSLOT}, s{S_WSLOT}, {SLOT}")
            k(f"buffer_load_dwordx4 v{V_DO}, s[{S_VS}:{S_VS + 3}], s{S_OFF} offen lds")
            k(f"s_and_b32 s{S_WSLOT}, s{S_WSLOT}, {RL * SLOT - 1}")
            k(f"s_add_u32 s{S_OFF}, s{S_OFF}, 8192")

        def kaddr(dt, half):
            t2 = tt + dt
            return (V_CUR, t2 * 2048 + half * 1024) if t2 < 4 else (V_NXT, (t2 - 4) * 2048 + half * 1024)

        k("s_waitcnt lgkmcnt(2)")
        k(f"{M32} {vr(nb, 16)}, {vr(KF, 4)}, {vr(Q, 4)}, {vr(NEGM, 16)}")
        a, o = kaddr(2, 0)
        k(f"ds_read_b128 v[{KF}:{KF + 3}], v{a} offset:{o}")
        ex(cb, 0, 4)
        k(f"{M32} {vr(O, 16)}, {vr(VF + 4, 4)}, {vr(P + 4, 4)}, {vr(O, 16)}")
        a, o = kaddr(0, 1)
        k(f"ds_read_b128 v[{VF + 4}:{VF + 7}], v{a} offset:{o + 8192}")
        cv(cb, 0, 2)
        k(f"{M16} {vr(LL, 4)}, {vr(SEL, 4)}, {vr(P + 4, 4)}, {vr(LL, 4)}")
        ex(cb, 4, 4)
        k("s_waitcnt lgkmcnt(2)")
        k(f"{M32} {vr(nb, 16)}, {vr(KF + 4, 4)}, {vr(Q + 4, 4)}, {vr(nb, 16)}")
        a, o = kaddr(2, 1)
        k(f"ds_read_b128 v[{KF + 4}:{KF + 7}], v{a} offset:{o}")
        cv(cb, 2, 2)
        ex(cb, 8, 2)
        k(f"{M32} {vr(O, 16)}, {vr(VF, 4)}, {vr(P, 4)}, {vr(O, 16)}")
        a, o = kaddr(1, 0)
        k(f"ds_read_b128 v[{VF}:{VF + 3}], v{a} offset:{o + 8192}")
        ex(cb, 10, 2)
        cv(cb, 4, 1)
        k(f"{M16} {vr(LL, 4)}, {vr(SEL, 4)}, {vr(P, 4)}, {vr(LL, 4)}")
        cv(cb, 5, 1)
        ex(cb, 12, 4)
        cv(cb, 6, 1)
        if tt == 3:
            k(f"v_mov_b32 v{V_CUR}, v{V_NXT}")
            k(f"s_sub_u32 s{S_CNT}, s{S_CNT}, 1")
            k(f"s_cmp_lg_u32 s{S_CNT}, 0")
        cv(cb, 7, 1)
    k(f"s_cbranch_scc1 {k.L('loop')}")
    k("s_waitcnt lgkmcnt(0)")
    k("s_nop 1")
    k(f"{M32} {vr(O, 16)}, {vr(VF + 4, 4)}, {vr(P + 4, 4)}, {vr(O, 16)}")
    k(f"{M16} {vr(LL, 4)}, {vr(SEL, 4)}, {vr(P + 4, 4)}, {vr(LL, 4)}")
    srd(k, S_OS, S_WS, WS_O, S * D * 2)
    k(f"s_lshl_b32 s{S_T}, s{S_QT}, 16")
    k(f"s_lshl_b32 s{S_T + 1}, s{S_HEAD}, 11")
    k(f"s_add_u32 s{S_T}, s{S_T}, s{S_T + 1}")
    k("s_nop 7")
    k("s_nop 7")
    k(f"v_rcp_f32 v{T}, v{LL}")
    k("s_nop 0")
    for r in range(16):
        k(f"v_mul_f32 v{O + r}, v{O + r}, v{T}")
    for q in range(8):
        k(f"v_cvt_pk_bf16_f32 v{P + q}, v{O + 2 * q}, v{O + 2 * q + 1}")
    k(f"buffer_store_dwordx4 v[{P}:{P + 3}], v{V_RB}, s[{S_OS}:{S_OS + 3}], s{S_T} offen")
    k(f"buffer_store_dwordx4 v[{P + 4}:{P + 7}], v{V_RB}, s[{S_OS}:{S_OS + 3}], s{S_T} offen offset:1024")
    k.label("done")
    k("s_endpgm")
    return k
```

```python
import sys, math

S, D, H, DH, F = 2048, 1024, 32, 32, 3584
MB = 1 << 20
WS_XN = 0
WS_Q = 4 * MB
WS_K = 8 * MB
WS_V = 12 * MB
WS_O = 16 * MB
WS_H = 20 * MB
WS_HN = 24 * MB
WS_ACT = 28 * MB
KA_X, KA_WQKV, KA_WO, KA_BX, KA_WG, KA_WU, KA_WD, KA_OUT, KA_DBG, KA_WS = [8 * i for i in range(10)]

LOG2E = 1.4426950408889634


def f32bits(x):
    import struct
    return struct.unpack("<I", struct.pack("<f", x))[0]


class K:
    def __init__(self, name, grid, block, lds, nvgpr, nagpr=0, nsgpr=96):
        self.name, self.grid, self.block, self.lds = name, grid, block, lds
        self.nvgpr, self.nagpr, self.nsgpr = nvgpr, nagpr, nsgpr
        self.lines = []

    def __call__(self, s):
        for l in s.split("\n"):
            l = l.strip()
            if l:
                self.lines.append(l if l.endswith(":") else "    " + l)

    def label(self, l):
        self.lines.append(f"{self.name}_{l}:")

    def L(self, l):
        return f"{self.name}_{l}"

    def text(self):
        return (f".globl {self.name}\n.p2align 8\n.type {self.name},@function\n{self.name}:\n"
                + "\n".join(self.lines) + "\n")

    def desc(self):
        acc = (self.nvgpr + 3) // 4 * 4
        nfv = acc + self.nagpr if self.nagpr else self.nvgpr
        return f""".p2align 6
.amdhsa_kernel {self.name}
  .amdhsa_next_free_vgpr {nfv}
  .amdhsa_next_free_sgpr {self.nsgpr}
  .amdhsa_accum_offset {acc}
  .amdhsa_group_segment_fixed_size 0
  .amdhsa_kernarg_size 80
  .amdhsa_user_sgpr_count 2
  .amdhsa_user_sgpr_kernarg_segment_ptr 1
  .amdhsa_system_sgpr_workgroup_id_x 1
.end_amdhsa_kernel
"""

    def launch(self):
        return f"; @launch kernel={self.name} grid=({self.grid},1,1) block=({self.block},1,1) lds={self.lds}"


def vr(b, n=1, f="v"):
    return f"{f}{b}" if n == 1 else f"{f}[{b}:{b + n - 1}]"


def srd(k, dst, ptr, off, nbytes, off_sgpr=None):
    if off:
        k(f"s_add_u32 s{dst}, s{ptr}, {off}")
        k(f"s_addc_u32 s{dst + 1}, s{ptr + 1}, 0")
    else:
        k(f"s_mov_b32 s{dst}, s{ptr}")
        k(f"s_mov_b32 s{dst + 1}, s{ptr + 1}")
    if off_sgpr is not None:
        k(f"s_add_u32 s{dst}, s{dst}, s{off_sgpr}")
        k(f"s_addc_u32 s{dst + 1}, s{dst + 1}, 0")
    k(f"s_mov_b32 s{dst + 2}, {nbytes}")
    k(f"s_mov_b32 s{dst + 3}, 0x20000")


def gen_ln(name, first):
    k = K(name, 256, 256, 256, 80)
    k(f"""
    s_load_dwordx2 s[4:5], s[0:1], {KA_X}
    s_load_dwordx2 s[6:7], s[0:1], {KA_WS}
    s_cmp_ge_u32 s2, 256
    s_cbranch_scc1 {k.L('done')}
    v_and_b32 v1, 7, v0               ; r8
    v_lshrrev_b32 v2, 6, v0           ; wave
    v_bfe_u32 v3, v0, 3, 3            ; lane>>3
    v_lshl_add_u32 v3, v2, 5, v3
    s_lshr_b32 s8, s2, 2              ; mt
    s_lshl_b32 s8, s8, 16
    s_and_b32 s9, s2, 3
    s_lshl_b32 s9, s9, 7              ; (b&3)*8*16
    s_add_u32 s8, s8, s9
    v_lshrrev_b32 v4, 1, v3
    v_lshlrev_b32 v4, 10, v4
    v_and_b32 v5, 1, v3
    v_lshl_add_u32 v4, v5, 9, v4
    v_lshl_add_u32 v4, v1, 4, v4
    v_add_u32 v4, s8, v4
    s_mov_b32 s20, 4096
    s_mov_b32 s21, 8192
    s_mov_b32 s22, 12288
    s_waitcnt lgkmcnt(0)
    """)
    if first:
        srd(k, 12, 4, 0, S * D * 2)
        srd(k, 16, 6, WS_XN, S * D * 2)
        k(f"""
        s_lshl_b32 s10, s2, 14            ; b*8 rows*2048
        v_lshlrev_b32 v5, 11, v1
        v_lshl_add_u32 v5, v3, 4, v5
        v_add_u32 v5, s10, v5
        """)
        for i in range(4):
            k(f"buffer_load_dwordx4 v[{8 + 4 * i}:{11 + 4 * i}], v5, s[12:15], 0 offen offset:{128 * i}")
    else:
        srd(k, 12, 6, WS_H, S * D * 2)
        srd(k, 16, 6, WS_HN, S * D * 2)
        for i in range(4):
            so = ["0", "s20", "s21", "s22"][i]
            k(f"buffer_load_dwordx4 v[{8 + 4 * i}:{11 + 4 * i}], v4, s[12:15], {so} offen")
    k("v_mov_b32 v6, 0")
    k("v_mov_b32 v7, 0")
    k("s_mov_b32 s23, 0xffff0000")
    for i in range(4):
        k(f"s_waitcnt vmcnt({3 - i})")
        for d in range(4):
            src = 8 + 4 * i + d
            lo, hi = 32 + 8 * i + 2 * d, 33 + 8 * i + 2 * d
            k(f"v_lshlrev_b32 v{lo}, 16, v{src}")
            k(f"v_and_b32 v{hi}, s23, v{src}")
            k(f"v_add_f32 v6, v6, v{lo}")
            k(f"v_fmac_f32 v7, v{lo}, v{lo}")
            k(f"v_add_f32 v6, v6, v{hi}")
            k(f"v_fmac_f32 v7, v{hi}, v{hi}")
    k("""
    s_nop 1
    v_add_f32_dpp v6, v6, v6 row_ror:8 row_mask:0xf bank_mask:0xf
    v_add_f32_dpp v7, v7, v7 row_ror:8 row_mask:0xf bank_mask:0xf
    s_nop 1
    v_mov_b32 v24, v6
    v_mov_b32 v25, v7
    s_nop 1
    v_permlane16_swap_b32 v6, v24
    v_permlane16_swap_b32 v7, v25
    s_nop 1
    v_add_f32 v6, v6, v24
    v_add_f32 v7, v7, v25
    s_nop 0
    v_mov_b32 v24, v6
    v_mov_b32 v25, v7
    s_nop 1
    v_permlane32_swap_b32 v6, v24
    v_permlane32_swap_b32 v7, v25
    s_nop 1
    v_add_f32 v6, v6, v24
    v_add_f32 v7, v7, v25
    v_lshlrev_b32 v26, 5, v1
    v_lshl_add_u32 v27, v2, 3, v26
    ds_write_b64 v27, v[6:7]
    s_waitcnt lgkmcnt(0)
    s_barrier
    ds_read_b128 v[64:67], v26
    ds_read_b128 v[68:71], v26 offset:16
    s_waitcnt lgkmcnt(0)
    v_add_f32 v6, v64, v66
    v_add_f32 v7, v65, v67
    v_add_f32 v24, v68, v70
    v_add_f32 v25, v69, v71
    v_add_f32 v6, v6, v24
    v_add_f32 v7, v7, v25
    v_mul_f32 v6, 0x3a800000, v6       ; mean
    v_mul_f32 v7, 0x3a800000, v7       ; E[x^2]
    v_fma_f32 v7, -v6, v6, v7          ; var
    v_max_f32 v7, 0, v7
    v_cvt_pk_bf16_f32 v24, v6, v7
    v_lshlrev_b32 v6, 16, v24          ; mean_bf
    v_and_b32 v7, s23, v24             ; var_bf
    v_add_f32 v7, 0x3727c5ac, v7       ; + 1e-5
    v_cvt_pk_bf16_f32 v24, v7, v7
    v_and_b32 v7, s23, v24
    v_sqrt_f32 v7, v7
    s_nop 0
    v_cvt_pk_bf16_f32 v24, v7, v7
    v_and_b32 v7, s23, v24
    v_rcp_f32 v7, v7
    s_nop 0
    """)
    for i in range(4):
        for d in range(4):
            lo, hi = 32 + 8 * i + 2 * d, 33 + 8 * i + 2 * d
            dst = 8 + 4 * i + d
            k(f"v_sub_f32 v{lo}, v{lo}, v6")
            k(f"v_sub_f32 v{hi}, v{hi}, v6")
            k(f"v_cvt_pk_bf16_f32 v24, v{lo}, v{hi}")
            k(f"v_lshlrev_b32 v{lo}, 16, v24")
            k(f"v_and_b32 v{hi}, s23, v24")
            k(f"v_mul_f32 v{lo}, v{lo}, v7")
            k(f"v_mul_f32 v{hi}, v{hi}, v7")
            k(f"v_cvt_pk_bf16_f32 v{dst}, v{lo}, v{hi}")
        so = ["0", "s20", "s21", "s22"][i]
        k(f"buffer_store_dwordx4 v[{8 + 4 * i}:{11 + 4 * i}], v4, s[16:19], {so} offen")
    k.label("done")
    k("s_endpgm")
    return k


class GemmCfg:
    pass


def gen_gemm(c):
    MT, NT, BK, KK = c.MT, c.NT, c.BK, c.K
    SS = BK // 16
    NST = KK // BK
    RA = 4
    RL = RA + 1
    DW = c.DW
    assert NST % RA == 0 and SS % DW == 0 and NT * DW <= 8
    kind = c.kind
    if kind == "gu":
        UPOFF = BK * 224 + 128
        SLOT = UPOFF + BK * 224
        NDMA = (BK * 14 * 2) // 64 // 4
        RSTR = 224
    else:
        NP = NT // 2
        SLOT = NP * BK * 128
        NDMA = NP * (BK // 8) // 4
        RSTR = 128
    lds = SLOT * RL
    nA = SS * MT
    big = MT * NT * 16 > 128
    ACC = 0
    nacc = MT * NT * 16
    v = nacc
    V_RB = v; v += 2
    V_RA = v; v += 2
    V_RN = v; v += 2
    V_AO = v; v += 2
    V_WO = v; v += NDMA
    V_T = v; v += 8
    V_LANE = v; v += 1
    v = (v + 3) // 4 * 4
    if big:
        AF, af = 0, "a"
        WF, wf = RA * nA * 4, "a"
        nagpr = WF + DW * NT * 4
        V_X = V_T
        nv = v
    else:
        AF, af = v, "v"; v += RA * nA * 4
        WF, wf = v, "v"; v += DW * NT * 4
        V_X = v; v += 16
        nagpr = 0
        nv = v
    assert nv <= 256
    k = K(c.name, 256, 256, lds, nv, nagpr)

    def areg(u, ss, i):
        return vr(AF + ((u * SS + ss) * MT + i) * 4, 4, af)

    def wreg(d, j, half=None):
        b = WF + (d * NT + j) * 4
        return vr(b, 4, wf) if half is None else vr(b + 2 * half, 2, wf)

    def acc(j, i):
        return ACC + (j * MT + i) * 16

    S_A = [4, 8]
    S_W = 12
    S_AOFF, S_WOFF, S_WSLOT, S_RSLOT, S_CNT, S_WAVE, S_RB, S_CB, S_MT = 16, 17, 18, 19, 20, 21, 22, 23, 24
    S_P0, S_P1, S_WS, S_P2 = 26, 28, 30, 32
    S_O = 36
    S_R = 40
    S_TMP = 44

    wptr = {"qkv": KA_WQKV, "out": KA_WO, "gu": KA_WG, "down": KA_WD}[kind]
    NW = {"qkv": 3 * D, "out": D, "gu": F, "down": D}[kind]
    k(f"""
    s_load_dwordx2 s[{S_P0}:{S_P0 + 1}], s[0:1], {wptr}
    s_load_dwordx2 s[{S_P1}:{S_P1 + 1}], s[0:1], {KA_WU}
    s_load_dwordx2 s[{S_WS}:{S_WS + 1}], s[0:1], {KA_WS}
    s_load_dwordx2 s[{S_P2}:{S_P2 + 1}], s[0:1], {KA_X if kind == 'out' else KA_OUT}
    s_cmp_ge_u32 s2, 256
    s_cbranch_scc1 {k.L('done')}
    v_lshrrev_b32 v{V_T}, 6, v0
    v_and_b32 v{V_LANE}, 63, v0
    v_readfirstlane_b32 s{S_WAVE}, v{V_T}
    s_and_b32 s{S_TMP}, s2, 7          ; xcd
    s_lshr_b32 s{S_TMP + 1}, s2, 3     ; idx 0..31
    """)
    if kind == "qkv":
        xs, xm, isx, im, rmul, cmul = 2, 3, 2, 3, 8, 4
    elif kind == "gu":
        xs, xm, isx, im, rmul, cmul = 2, 3, 3, 7, 4, 8
    else:
        xs, xm, isx, im, rmul, cmul = 1, 1, 3, 7, 4, 8
    k(f"""
    s_lshr_b32 s{S_RB}, s{S_TMP}, {xs}
    s_mul_i32 s{S_RB}, s{S_RB}, {rmul}
    s_lshr_b32 s{S_TMP + 2}, s{S_TMP + 1}, {isx}
    s_add_u32 s{S_RB}, s{S_RB}, s{S_TMP + 2}
    s_and_b32 s{S_CB}, s{S_TMP}, {xm}
    s_mul_i32 s{S_CB}, s{S_CB}, {cmul}
    s_and_b32 s{S_TMP + 2}, s{S_TMP + 1}, {im}
    s_add_u32 s{S_CB}, s{S_CB}, s{S_TMP + 2}
    s_lshl_b32 s{S_MT}, s{S_RB}, 2
    s_add_u32 s{S_MT}, s{S_MT}, s{S_WAVE}
    s_mul_i32 s{S_MT}, s{S_MT}, {MT}
    """)
    L = V_LANE
    T = V_T
    k(f"v_lshlrev_b32 v{V_AO}, 4, v{L}")
    k(f"v_add_u32 v{V_AO + 1}, 4096, v{V_AO}")
    if kind == "gu":
        k(f"s_lshr_b32 s{S_TMP + 2}, s{S_WAVE}, 1")
        k(f"s_mul_i32 s{S_TMP + 2}, s{S_TMP + 2}, {(BK // 2) * NW * 2}")
        k(f"s_mul_i32 s{S_TMP + 3}, s{S_CB}, 224")
        k(f"s_add_u32 s{S_TMP + 2}, s{S_TMP + 2}, s{S_TMP + 3}")
        k(f"s_movk_i32 s{S_TMP + 3}, 4682")
        k(f"s_movk_i32 s{S_TMP + 4}, {NW * 2 - 224}")
        for i in range(NDMA):
            k(f"v_add_u32 v{T}, {64 * i}, v{L}")
            k(f"v_mul_lo_u32 v{T + 1}, v{T}, s{S_TMP + 3}")
            k(f"v_lshrrev_b32 v{T + 1}, 16, v{T + 1}")
            k(f"v_mul_lo_u32 v{T + 1}, v{T + 1}, s{S_TMP + 4}")
            k(f"v_lshl_add_u32 v{T + 1}, v{T}, 4, v{T + 1}")
            k(f"v_add_u32 v{V_WO + i}, s{S_TMP + 2}, v{T + 1}")
    else:
        RPW = BK // 8 // 4
        k(f"v_lshrrev_b32 v{T}, 3, v{L}")
        k(f"v_and_b32 v{T + 1}, 7, v{L}")
        k(f"v_bfe_u32 v{T + 2}, v{L}, 4, 1")
        k(f"v_lshlrev_b32 v{T + 2}, 2, v{T + 2}")
        k(f"v_xor_b32 v{T + 1}, v{T + 1}, v{T + 2}")
        k(f"s_movk_i32 s{S_TMP + 3}, {NW * 2}")
        k(f"v_mul_lo_u32 v{T}, v{T}, s{S_TMP + 3}")
        k(f"v_lshl_add_u32 v{T}, v{T + 1}, 4, v{T}")
        k(f"s_mul_i32 s{S_TMP + 2}, s{S_WAVE}, {RPW * 8 * NW * 2}")
        k(f"s_lshl_b32 s{S_TMP + 3}, s{S_CB}, 7")
        k(f"s_add_u32 s{S_TMP + 2}, s{S_TMP + 2}, s{S_TMP + 3}")
        k(f"v_add_u32 v{T}, s{S_TMP + 2}, v{T}")
        for i in range(NDMA):
            t, r = i // RPW, i % RPW
            k(f"v_add_u32 v{V_WO + i}, {t * D * 2 + r * 8 * NW * 2}, v{T}")
    if kind == "gu":
        k(f"s_and_b32 s{S_TMP + 2}, s{S_WAVE}, 1")
        k(f"s_mul_i32 s{S_TMP + 2}, s{S_TMP + 2}, {UPOFF}")
        k(f"s_lshr_b32 s{S_TMP + 3}, s{S_WAVE}, 1")
        k(f"s_mul_i32 s{S_TMP + 3}, s{S_TMP + 3}, {(BK // 2) * 224}")
        k(f"s_add_u32 s{S_TMP + 5}, s{S_TMP + 2}, s{S_TMP + 3}")
        dma_lds = [1024 * i for i in range(NDMA)]
    else:
        RPW = BK // 8 // 4
        k(f"s_mul_i32 s{S_TMP + 5}, s{S_WAVE}, {RPW * 1024}")
        dma_lds = [(i // RPW) * BK * 128 + (i % RPW) * 1024 for i in range(NDMA)]
    S_WBASE = S_TMP + 5
    HS, S2 = (4, 8) if c.kperm else (8, 4)
    k(f"v_bfe_u32 v{T}, v{L}, 2, 2")
    k(f"v_lshrrev_b32 v{T + 1}, 5, v{L}")
    k(f"v_mul_u32_u24 v{T + 1}, {HS}, v{T + 1}")
    k(f"v_add_u32 v{T + 1}, v{T + 1}, v{T}")
    k(f"v_mul_u32_u24 v{T + 1}, {RSTR}, v{T + 1}")
    k(f"v_and_b32 v{T + 2}, 3, v{L}")
    k(f"v_lshl_add_u32 v{T + 1}, v{T + 2}, 3, v{T + 1}")
    k(f"v_bfe_u32 v{T + 2}, v{L}, 4, 1")
    if kind == "gu":
        k(f"v_mul_u32_u24 v{T + 2}, {UPOFF}, v{T + 2}")
        k(f"v_add_u32 v{V_RB}, v{T + 1}, v{T + 2}")
        k(f"v_mov_b32 v{V_RB + 1}, v{V_RB}")
    else:
        k(f"v_lshl_add_u32 v{T + 1}, v{T + 2}, 5, v{T + 1}")
        k(f"v_bfe_u32 v{T + 2}, v{L}, 3, 1")
        k(f"v_lshl_add_u32 v{V_RB}, v{T + 2}, 6, v{T + 1}")
        k(f"v_xor_b32 v{V_RB + 1}, 64, v{V_RB}")

    def tr_off(j, ss, half):
        if kind == "gu":
            return (ss * 16 + S2 * half) * RSTR + j * 32, 0
        return (j // 2) * BK * 128 + (ss * 16 + S2 * half) * RSTR, j % 2

    k("s_waitcnt lgkmcnt(0)")
    for i in range(MT):
        k(f"s_add_u32 s{S_TMP + 2}, s{S_MT}, {i}")
        k(f"s_mul_i32 s{S_TMP + 2}, s{S_TMP + 2}, {KK * 64}")
        srd(k, S_A[i], S_WS, c.a_off, KK * 64, off_sgpr=S_TMP + 2)
    if kind == "gu":
        k(f"s_bitcmp1_b32 s{S_WAVE}, 0")
        k(f"s_cselect_b32 s{S_W}, s{S_P1}, s{S_P0}")
        k(f"s_cselect_b32 s{S_W + 1}, s{S_P1 + 1}, s{S_P0 + 1}")
        k(f"s_mov_b32 s{S_W + 2}, {KK * NW * 2}")
        k(f"s_mov_b32 s{S_W + 3}, 0x20000")
    else:
        srd(k, S_W, S_P0, 0, KK * NW * 2)

    if kind == "out":
        srd(k, S_R, S_P2, 0, S * D * 2)
        k(f"v_and_b32 v{T}, 31, v{L}")
        k(f"v_lshlrev_b32 v{T}, 11, v{T}")
        k(f"v_lshrrev_b32 v{T + 1}, 5, v{L}")
        k(f"v_lshl_add_u32 v{T}, v{T + 1}, 3, v{T}")
        k(f"s_lshl_b32 s{S_TMP + 2}, s{S_MT}, 16")
        k(f"s_lshl_b32 s{S_TMP + 3}, s{S_CB}, 7")
        k(f"s_add_u32 s{S_TMP + 2}, s{S_TMP + 2}, s{S_TMP + 3}")
        for j in range(NT):
            for a in range(4):
                k(f"buffer_load_dwordx2 v[{V_X + (j * 4 + a) * 2}:{V_X + (j * 4 + a) * 2 + 1}], v{T}, s[{S_R}:{S_R + 3}], s{S_TMP + 2} offen offset:{j * 64 + a * 16}")
    elif kind == "down":
        srd(k, S_R, S_WS, WS_H, S * D * 2)
        k(f"s_lshl_b32 s{S_TMP + 2}, s{S_MT}, 16")
        k(f"s_lshl_b32 s{S_TMP + 3}, s{S_CB}, 12")
        k(f"s_add_u32 s{S_TMP + 2}, s{S_TMP + 2}, s{S_TMP + 3}")
        for b in range(4):
            k(f"buffer_load_dwordx4 v[{V_X + b * 4}:{V_X + b * 4 + 3}], v{V_AO}, s[{S_R}:{S_R + 3}], s{S_TMP + 2} offen offset:{b * 1024}")

    NM = SS * NT * MT
    BAR_SS = SS - DW

    def a_load(u, ss, i):
        off = ss * 1024
        return (f"buffer_load_dwordx4 {areg(u, ss, i)}, v{V_AO + (off >> 12)}, s[{S_A[i]}:{S_A[i] + 3}], s{S_AOFF} offen offset:{off & 4095}")

    def w_dma(i):
        return [f"s_add_u32 m0, s{S_WSLOT}, {dma_lds[i]}",
                f"buffer_load_dwordx4 v{V_WO + i}, s[{S_W}:{S_W + 3}], s{S_WOFF} offen lds"]

    bar_gap = BAR_SS * NT * MT
    wpos = []
    for i in range(NDMA):
        p = bar_gap + int((i + 0.5) * NM / NDMA)
        wpos.append(p)

    def adv_slot(sreg, base_sgpr=None):
        out = [f"s_add_u32 s{sreg}, s{sreg}, {SLOT}"]
        return out

    def stage_ops(t):
        ops = []
        for g in range(NM):
            ss = g // (NT * MT)
            if g == bar_gap:
                ops.append(("BAR", t))
            if (g + 1) % (NT * MT) == 0:
                for i in range(MT):
                    ops.append(("A", t + RA, ss, i))
            for i, p in enumerate(wpos):
                if p == g:
                    ops.append(("W", t + RA, i))
                elif p - NM == g:
                    ops.append(("W", t + RA - 1, i))
        return ops

    seq = []
    for t in range(-RA - 1, 3):
        seq += stage_ops(t)
    ib = seq.index(("BAR", 0))
    need = max(i for i, o in enumerate(seq[:ib]) if o[0] in "AW" and o[0] != "BAR" and o[1] == 1)
    VM_BAR = sum(1 for o in seq[need + 1:ib] if o[0] != "BAR")
    assert VM_BAR <= 63
    i0 = len(sum([stage_ops(t) for t in range(-RA - 1, 0)], []))
    pro = [o for o in seq[:i0] if o[0] != "BAR" and o[1] >= 0]
    need0 = max(i for i, o in enumerate(pro) if o[1] == 0)
    VM_PRO = len(pro) - 1 - need0
    assert len(pro) <= 63, len(pro)

    for o in pro:
        if o[0] == "A":
            _, b, ss, i = o
            k(f"s_mov_b32 s{S_AOFF}, {b * BK * 64}")
            k(a_load(b % RA, ss, i))
        else:
            _, b, i = o
            k(f"s_mov_b32 s{S_WOFF}, {b * BK * NW * 2}")
            k(f"s_add_u32 m0, s{S_WBASE}, {(b % RL) * SLOT + dma_lds[i]}")
            k("s_nop 0")
            k(f"buffer_load_dwordx4 v{V_WO + i}, s[{S_W}:{S_W + 3}], s{S_WOFF} offen lds")
    k(f"s_mov_b32 s{S_AOFF}, {RA * BK * 64}")
    k(f"s_mov_b32 s{S_WOFF}, {(RA - 1) * BK * NW * 2}")
    k(f"s_add_u32 s{S_WSLOT}, s{S_WBASE}, {((RA - 1) % RL) * SLOT}")
    k(f"s_add_u32 s{S_TMP + 6}, s{S_WBASE}, {RL * SLOT}")
    S_WLIM = S_TMP + 6
    k(f"s_mov_b32 s{S_RSLOT}, 0")
    k(f"s_mov_b32 s{S_CNT}, {NST // RA}")
    for r in range(nacc):
        k(f"v_mov_b32 v{ACC + r}, 0")
    k(f"v_mov_b32 v{V_RA}, v{V_RB}")
    k(f"v_mov_b32 v{V_RA + 1}, v{V_RB + 1}")
    k(f"s_waitcnt vmcnt({VM_PRO})")
    k("s_barrier")
    for d in range(DW):
        for j in range(NT):
            for half in range(2):
                off, h = tr_off(j, d, half)
                k(f"ds_read_b64_tr_b16 {wreg(d, j, half)}, v{V_RA + h} offset:{off}")
    LGK = 2 * (NT * DW - 1)

    k.label("loop")
    for u in range(RA):
        cur, nxt = (V_RA, V_RN) if u % 2 == 0 else (V_RN, V_RA)
        for g in range(NM):
            ss = g // (NT * MT)
            j = (g // MT) % NT
            i = g % MT
            d = ss % DW
            if g == bar_gap:
                k(f"s_add_u32 s{S_RSLOT}, s{S_RSLOT}, {SLOT}")
                k(f"s_cmp_eq_u32 s{S_RSLOT}, {RL * SLOT}")
                k(f"s_cselect_b32 s{S_RSLOT}, 0, s{S_RSLOT}")
                k(f"v_add_u32 v{nxt}, s{S_RSLOT}, v{V_RB}")
                if kind != "gu":
                    k(f"v_add_u32 v{nxt + 1}, s{S_RSLOT}, v{V_RB + 1}")
                k(f"s_add_u32 s{S_WSLOT}, s{S_WSLOT}, {SLOT}")
                k(f"s_cmp_eq_u32 s{S_WSLOT}, s{S_WLIM}")
                k(f"s_cselect_b32 s{S_WSLOT}, s{S_WBASE}, s{S_WSLOT}")
                k(f"s_add_u32 s{S_WOFF}, s{S_WOFF}, {BK * NW * 2}")
                k(f"s_waitcnt vmcnt({VM_BAR})")
                k("s_barrier")
            if i == 0:
                k(f"s_waitcnt lgkmcnt({LGK})")
            a, w = areg(u, ss, i), wreg(d, j)
            swap = (kind == "qkv" and j >= 4)
            x, y = (a, w) if swap else (w, a)
            k(f"v_mfma_f32_32x32x16_bf16 {vr(acc(j, i), 16)}, {x}, {y}, {vr(acc(j, i), 16)}")
            pend = []
            for ii, p in enumerate(wpos):
                if p == g or p - NM == g:
                    pend.append(ii)
            if pend:
                k(w_dma(pend[0])[0])
            if i == MT - 1:
                ss2 = ss + DW
                base = cur
                if ss2 >= SS:
                    ss2 -= SS
                    base = nxt
                for half in range(2):
                    off, h = tr_off(j, ss2, half)
                    if kind == "gu":
                        h = 0
                    k(f"ds_read_b64_tr_b16 {wreg(d, j, half)}, v{base + h} offset:{off}")
            need_nop = pend and i != MT - 1 and not ((g + 1) % (NT * MT) == 0)
            if (g + 1) % (NT * MT) == 0:
                for ii in range(MT):
                    k(a_load(u, ss, ii))
            if need_nop:
                k("s_nop 0")
            for n, ii in enumerate(pend):
                if n:
                    k(w_dma(ii)[0])
                    k("s_nop 0")
                k(w_dma(ii)[1])
            if g == NM - 1:
                k(f"s_add_u32 s{S_AOFF}, s{S_AOFF}, {BK * 64}")
    k(f"s_sub_u32 s{S_CNT}, s{S_CNT}, 1")
    k(f"s_cmp_lg_u32 s{S_CNT}, 0")
    k(f"s_cbranch_scc1 {k.L('loop')}")
    k("s_nop 7")
    k("s_nop 7")

    P = AF if not big else None
    k("s_waitcnt vmcnt(0) lgkmcnt(0)")
    if kind == "qkv":
        srd(k, S_O, S_WS, WS_Q, 12 * MB)
        k(f"s_mov_b32 s{S_TMP + 2}, {f32bits(LOG2E / math.sqrt(DH)):#x}")
        for j in range(NT):
            t, h64 = j // 2, j % 2
            k(f"s_lshl_b32 s{S_TMP + 3}, s{S_CB}, 18")
            k(f"s_lshl_b32 s{S_TMP + 4}, s{S_MT}, 11")
            k(f"s_add_u32 s{S_TMP + 3}, s{S_TMP + 3}, s{S_TMP + 4}")
            k(f"s_add_u32 s{S_TMP + 3}, s{S_TMP + 3}, {t * 4 * MB + h64 * 131072}")
            a0 = acc(j, 0)
            if t == 0:
                for r in range(16):
                    k(f"v_mul_f32 v{a0 + r}, s{S_TMP + 2}, v{a0 + r}")
            for blk in range(2):
                pb = P + (j * 2 + blk) * 4
                for q in range(4):
                    k(f"v_cvt_pk_bf16_f32 v{pb + q}, v{a0 + blk * 8 + 2 * q}, v{a0 + blk * 8 + 2 * q + 1}")
                k(f"buffer_store_dwordx4 v[{pb}:{pb + 3}], v{V_AO}, s[{S_O}:{S_O + 3}], s{S_TMP + 3} offen offset:{blk * 1024}")
    elif kind == "out":
        srd(k, S_O, S_WS, WS_H, S * D * 2)
        k(f"s_lshl_b32 s{S_TMP + 3}, s{S_MT}, 16")
        k(f"s_lshl_b32 s{S_TMP + 4}, s{S_CB}, 12")
        k(f"s_add_u32 s{S_TMP + 3}, s{S_TMP + 3}, s{S_TMP + 4}")
        k(f"s_mov_b32 s{S_TMP + 2}, 0xffff0000")
        for j in range(NT):
            a0 = acc(j, 0)
            for blk in range(2):
                pb = P + (j * 2 + blk) * 4
                for q in range(4):
                    r0, r1 = a0 + blk * 8 + 2 * q, a0 + blk * 8 + 2 * q + 1
                    xs_ = V_X + (j * 4 + blk * 2 + q // 2) * 2 + (q % 2)
                    k(f"v_cvt_pk_bf16_f32 v{T}, v{r0}, v{r1}")
                    k(f"v_lshlrev_b32 v{r0}, 16, v{T}")
                    k(f"v_and_b32 v{r1}, s{S_TMP + 2}, v{T}")
                    k(f"v_lshlrev_b32 v{T + 1}, 16, v{xs_}")
                    k(f"v_and_b32 v{T + 2}, s{S_TMP + 2}, v{xs_}")
                    k(f"v_add_f32 v{r0}, v{r0}, v{T + 1}")
                    k(f"v_add_f32 v{r1}, v{r1}, v{T + 2}")
                    k(f"v_cvt_pk_bf16_f32 v{pb + q}, v{r0}, v{r1}")
                k(f"buffer_store_dwordx4 v[{pb}:{pb + 3}], v{V_AO}, s[{S_O}:{S_O + 3}], s{S_TMP + 3} offen offset:{(j * 2 + blk) * 1024}")
    elif kind == "gu":
        srd(k, S_O, S_WS, WS_ACT, S * F * 2)
        k(f"s_mov_b32 s{S_TMP + 2}, {f32bits(-LOG2E):#x}")
        for i in range(MT):
            k(f"s_add_u32 s{S_TMP + 3}, s{S_MT}, {i}")
            k(f"s_mul_i32 s{S_TMP + 3}, s{S_TMP + 3}, {F // 16}")
            k(f"s_mul_i32 s{S_TMP + 4}, s{S_CB}, 7")
            k(f"s_add_u32 s{S_TMP + 3}, s{S_TMP + 3}, s{S_TMP + 4}")
            k(f"s_lshl_b32 s{S_TMP + 3}, s{S_TMP + 3}, 10")
            for j in range(NT):
                a0 = acc(j, i)
                for r in range(8):
                    k(f"v_mul_f32 v{a0 + r}, s{S_TMP + 2}, v{a0 + r}")
                for r in range(8):
                    k(f"v_exp_f32 v{a0 + r}, v{a0 + r}")
                for r in range(8):
                    k(f"v_add_f32 v{a0 + r}, 1.0, v{a0 + r}")
                for r in range(8):
                    k(f"v_rcp_f32 v{a0 + r}, v{a0 + r}")
                for r in range(8):
                    k(f"v_mul_f32 v{a0 + 8 + r}, v{a0 + r}, v{a0 + 8 + r}")
                for q in range(4):
                    k(f"v_cvt_pk_bf16_f32 v{a0 + q}, v{a0 + 8 + 2 * q}, v{a0 + 9 + 2 * q}")
                off = j * 1024
                k(f"buffer_store_dwordx4 v[{a0}:{a0 + 3}], v{V_AO + (off >> 12)}, s[{S_O}:{S_O + 3}], s{S_TMP + 3} offen offset:{off & 4095}")
    elif kind == "down":
        srd(k, S_O, S_P2, 0, S * D * 2)
        k(f"v_and_b32 v{T + 4}, 31, v{L}")
        k(f"v_lshlrev_b32 v{T + 4}, 11, v{T + 4}")
        k(f"v_lshrrev_b32 v{T + 1}, 5, v{L}")
        k(f"v_lshl_add_u32 v{T + 4}, v{T + 1}, 3, v{T + 4}")
        k(f"s_lshl_b32 s{S_TMP + 3}, s{S_MT}, 16")
        k(f"s_lshl_b32 s{S_TMP + 4}, s{S_CB}, 7")
        k(f"s_add_u32 s{S_TMP + 3}, s{S_TMP + 3}, s{S_TMP + 4}")
        k(f"s_mov_b32 s{S_TMP + 2}, 0xffff0000")
        for j in range(NT):
            a0 = acc(j, 0)
            for blk in range(2):
                pb = P + (j * 2 + blk) * 4
                for q in range(4):
                    r0, r1 = a0 + blk * 8 + 2 * q, a0 + blk * 8 + 2 * q + 1
                    xs_ = V_X + (j * 2 + blk) * 4 + q
                    k(f"v_cvt_pk_bf16_f32 v{T}, v{r0}, v{r1}")
                    k(f"v_lshlrev_b32 v{r0}, 16, v{T}")
                    k(f"v_and_b32 v{r1}, s{S_TMP + 2}, v{T}")
                    k(f"v_lshlrev_b32 v{T + 1}, 16, v{xs_}")
                    k(f"v_and_b32 v{T + 2}, s{S_TMP + 2}, v{xs_}")
                    k(f"v_add_f32 v{r0}, v{r0}, v{T + 1}")
                    k(f"v_add_f32 v{r1}, v{r1}, v{T + 2}")
                    k(f"v_cvt_pk_bf16_f32 v{pb + q}, v{r0}, v{r1}")
                for a in range(2):
                    k(f"buffer_store_dwordx2 v[{pb + 2 * a}:{pb + 2 * a + 1}], v{T + 4}, s[{S_O}:{S_O + 3}], s{S_TMP + 3} offen offset:{j * 64 + blk * 32 + a * 16}")
    k.label("done")
    k("s_endpgm")
    return k


def cfg(**kw):
    c = GemmCfg()
    c.__dict__.update(kw)
    return c


def build(kernels, path):
    hdr = open("sequential_preLN__mha_block__glu_gated_glu__prompt.s.ref").read().split("\n")
    hdr = [l for l in hdr if l.startswith(";") and "@launch" not in l and "Override" not in l and "grid=ceil" not in l]
    out = "\n".join(hdr) + "\n" + "\n".join(k.launch() for k in kernels) + "\n"
    out += '.amdgcn_target "amdgcn-amd-amdhsa--gfx950"\n.text\n'
    seen = []
    for k in kernels:
        if k.name not in seen:
            out += k.text()
            seen.append(k.name)
    out += '.section .rodata,"a"\n'
    seen = []
    for k in kernels:
        if k.name not in seen:
            out += k.desc()
            seen.append(k.name)
    open(path, "w").write(out)


if __name__ == "__main__":
    from gen_attn import gen_attn
    ks = [
        gen_ln("ln1_kernel", True),
        gen_gemm(cfg(name="qkv_kernel", kind="qkv", MT=1, NT=6, BK=64, K=D, DW=1, a_off=WS_XN, kperm=False)),
        gen_attn("attn_kernel"),
        gen_gemm(cfg(name="outp_kernel", kind="out", MT=1, NT=2, BK=128, K=D, DW=4, a_off=WS_O, kperm=True)),
        gen_ln("ln2_kernel", False),
        gen_gemm(cfg(name="gu_kernel", kind="gu", MT=2, NT=7, BK=64, K=D, DW=1, a_off=WS_HN, kperm=True)),
        gen_gemm(cfg(name="down_kernel", kind="down", MT=1, NT=2, BK=128, K=F, DW=4, a_off=WS_ACT, kperm=True)),
    ]
    build(ks, sys.argv[1] if len(sys.argv) > 1 else "sequential_preLN__mha_block__glu_gated_glu__prompt.s")
```

```python
class Item:
    __slots__ = ("kind", "txt", "tag", "pre")

    def __init__(self, kind, txt=None, tag=None, pre=None):
        self.kind, self.txt, self.tag, self.pre = kind, txt, tag, pre


def T(txt):
    return Item("txt", txt)


def VM(tag, txt, pre=None):
    return Item("vm", txt, tag, pre or [])


def DS(tag, txt):
    return Item("ds", txt, tag)


def NEEDV(tag):
    return Item("needv", None, tag)


def NEEDD(tag):
    return Item("needd", None, tag)


def match(tag, pat):
    return tag[:len(pat)] == pat


class Sim:
    def __init__(self):
        self.vm, self.ds = [], []
        self.vm_done, self.ds_done = -1, -1

    def need(self, lst, done, pats, cap):
        idx = -1
        for p in pats:
            found = [i for i, t in enumerate(lst) if match(t, p)]
            assert found, f"needed op {p} not issued"
            idx = max(idx, found[-1])
        if idx > done:
            n = min(len(lst) - 1 - idx, cap)
            return n, len(lst) - 1 - n
        return None, done

    def wait(self, vpats, dpats):
        parts = []
        if vpats:
            n, self.vm_done = self.need(self.vm, self.vm_done, vpats, 63)
            if n is not None:
                parts.append(f"vmcnt({n})")
        if dpats:
            n, self.ds_done = self.need(self.ds, self.ds_done, dpats, 15)
            if n is not None:
                parts.append(f"lgkmcnt({n})")
        return "s_waitcnt " + " ".join(parts) if parts else None

    def emit(self, items):
        out = []
        items = list(items)
        hoisted = None
        nh = 0
        seen_vm = False
        for it in items:
            if it.kind in ("needv", "needd", "bar"):
                break
            if it.kind == "vm":
                if it.pre and "m0" in it.pre[0]:
                    hoisted = it
                    nh = 1 if seen_vm else len(it.pre)
                    out += it.pre[:nh]
                    break
                seen_vm = True
        since = nh - 1
        i = 0
        while i < len(items):
            it = items[i]
            if it.kind in ("needv", "needd"):
                vp, dp = [], []
                while i < len(items) and items[i].kind in ("needv", "needd"):
                    (vp if items[i].kind == "needv" else dp).append(items[i].tag)
                    i += 1
                w = self.wait(vp, dp)
                if w:
                    out.append(w)
                    since += 1
                continue
            if it.kind == "vm":
                if it is hoisted:
                    out += it.pre[nh:]
                    since += len(it.pre) - nh
                elif it.pre:
                    out += it.pre
                    if "m0" in it.pre[0]:
                        since = len(it.pre) - 1
                    else:
                        since += len(it.pre)
                if it.pre and "m0" in it.pre[0] and since < 1:
                    out.append("s_nop 0")
                out.append(it.txt)
                self.vm.append(it.tag)
            elif it.kind == "ds":
                out.append(it.txt)
                self.ds.append(it.tag)
            elif it.kind == "bar":
                out.append("s_barrier")
            else:
                out.append(it.txt)
            since += 1
            i += 1
        return out


def fold(k, groups, cnt_sgpr, label="loop"):
    n = len(groups)
    best = (0, 0)
    i = 0
    while i < n:
        j = i
        while j + 1 < n and groups[j + 1] == groups[i]:
            j += 1
        if j - i + 1 > best[1]:
            best = (i, j - i + 1)
        i = j + 1
    s, ln = best
    for g in range(n):
        if ln >= 2 and g == s:
            k(f"s_mov_b32 s{cnt_sgpr}, {ln}")
            k.stamp(2)
            k.label(label)
            body = list(groups[g])
            body.insert(2, f"s_sub_u32 s{cnt_sgpr}, s{cnt_sgpr}, 1")
            for l in body:
                k(l)
            k(f"s_cmp_lg_u32 s{cnt_sgpr}, 0")
            k(f"s_cbranch_scc1 {k.L(label)}")
            k.stamp(3)
        elif ln >= 2 and s < g < s + ln:
            continue
        else:
            for l in groups[g]:
                k(l)
    return best
```

```python
from gen_common import *

M32 = "v_mfma_f32_32x32x16_bf16"
M16 = "v_mfma_f32_16x16x32_bf16"


def gen_attn(name):
    RL = 4
    SLOT = 16384
    k = K(name, 256, 512, RL * SLOT, 140)
    S0, S1, O, NEGM, P, LL, Q, KF, VF, SEL, PFB, CSA, SEL2 = 16, 32, 48, 64, 80, 88, 92, 100, 108, 116, 120, 128, 132
    SB = [S0, S1]
    V_LANE, V_DO, V_RB, V_CUR, V_NXT, V_PF, T = 1, 2, 3, 4, 5, 6, 8
    S_WS, S_KS, S_VS, S_QS, S_OS = 4, 8, 12, 16, 20
    S_WAVE, S_HEAD, S_QT, S_OFF, S_WSLOT, S_RSLOT, S_CNT, S_WB, S_T = 24, 25, 26, 27, 28, 29, 30, 31, 32
    S_PF, S_PFO, S_PFS, S_CSO, S_XCD, S_IDX = 40, 44, 45, 46, 47, 48
    S_WG, S_WU, S_WD, S_WO = 52, 54, 56, 58
    k(f"""
    s_load_dwordx2 s[{S_WS}:{S_WS + 1}], s[0:1], {KA_WS}
    s_load_dwordx4 s[{S_WG}:{S_WG + 3}], s[0:1], {KA_WG}
    s_load_dwordx2 s[{S_WD}:{S_WD + 1}], s[0:1], {KA_WD}
    s_load_dwordx2 s[{S_WO}:{S_WO + 1}], s[0:1], {KA_WO}
    s_cmp_ge_u32 s2, 256
    s_cbranch_scc1 {k.L('done')}
    v_lshrrev_b32 v{T}, 6, v0
    v_and_b32 v{V_LANE}, 63, v0
    v_readfirstlane_b32 s{S_WAVE}, v{T}
    s_and_b32 s{S_XCD}, s2, 7
    s_lshr_b32 s{S_IDX}, s2, 3
    s_lshl_b32 s{S_HEAD}, s{S_XCD}, 2
    s_lshr_b32 s{S_T + 2}, s{S_IDX}, 3
    s_add_u32 s{S_HEAD}, s{S_HEAD}, s{S_T + 2}
    s_and_b32 s{S_QT}, s{S_IDX}, 7
    s_lshl_b32 s{S_QT}, s{S_QT}, 3
    s_add_u32 s{S_QT}, s{S_QT}, s{S_WAVE}             ; q tile
    v_lshlrev_b32 v{V_RB}, 4, v{V_LANE}               ; lane*16
    v_lshlrev_b32 v{V_DO}, 4, v0
    s_lshl_b32 s{S_WB}, s{S_WAVE}, 10
    s_lshl_b32 s{S_T + 3}, s{S_HEAD}, 17
    s_lshr_b32 s{S_T + 4}, s{S_XCD}, 2
    s_lshl_b32 s{S_T + 4}, s{S_T + 4}, 5
    s_add_u32 s{S_T + 4}, s{S_T + 4}, s{S_IDX}
    s_mul_i32 s{S_T + 4}, s{S_T + 4}, 7
    s_add_u32 s{S_T + 4}, s{S_T + 4}, s{S_WAVE}        ; task
    s_lshr_b32 s{S_T + 5}, s{S_T + 4}, 4               ; panel28
    s_and_b32 s{S_T + 4}, s{S_T + 4}, 15               ; slice
    s_cmp_ge_u32 s{S_T + 5}, 14
    s_cselect_b32 s{S_T + 6}, 14, 0
    s_cselect_b32 s{S_T + 7}, {F}, 0                   ; mat*F
    s_sub_u32 s{S_T + 5}, s{S_T + 5}, s{S_T + 6}       ; p14
    s_lshl_b32 s{S_T + 5}, s{S_T + 5}, 6
    s_and_b32 s{S_T + 6}, s{S_XCD}, 3
    s_mul_i32 s{S_T + 6}, s{S_T + 6}, 896
    s_add_u32 s{S_T + 5}, s{S_T + 5}, s{S_T + 6}
    s_mul_i32 s{S_PFO}, s{S_T + 4}, {64 * F * 2}
    s_lshl_b32 s{S_T + 6}, s{S_T + 5}, 1
    s_add_u32 s{S_PFO}, s{S_PFO}, s{S_T + 6}
    s_mov_b32 s{S_PFS}, {8 * F * 2}
    s_mul_i32 s{S_CSO}, s{S_T + 4}, {2 * F * 4}
    s_add_u32 s{S_T + 5}, s{S_T + 5}, s{S_T + 7}
    s_lshl_b32 s{S_T + 5}, s{S_T + 5}, 2
    s_add_u32 s{S_CSO}, s{S_CSO}, s{S_T + 5}
    v_lshrrev_b32 v{T}, 3, v{V_LANE}
    v_mul_u32_u24 v{T}, {F * 2}, v{T}
    v_and_b32 v{T + 1}, 7, v{V_LANE}
    v_lshl_add_u32 v{V_PF}, v{T + 1}, 4, v{T}
    s_waitcnt lgkmcnt(0)
    """)
    k.stamp(0)
    srd(k, S_KS, S_WS, WS_K, 131072, off_sgpr=S_T + 3)
    srd(k, S_QS, S_WS, WS_Q, 131072, off_sgpr=S_T + 3)
    srd(k, S_VS, S_WS, WS_V, 131072, off_sgpr=S_T + 3)
    k(f"s_cmp_lg_u32 s{S_T + 7}, 0")
    k(f"s_cselect_b32 s{S_PF}, s{S_WU}, s{S_WG}")
    k(f"s_cselect_b32 s{S_PF + 1}, s{S_WU + 1}, s{S_WG + 1}")
    k(f"s_cmp_eq_u32 s{S_WAVE}, 7")
    k(f"s_cselect_b32 s{S_PF + 2}, 0, {D * F * 2}")
    k(f"s_mov_b32 s{S_PF + 3}, 0x20000")
    k(f"s_lshl_b32 s{S_T + 4}, s{S_QT}, 11")

    def pf(buf):
        k(f"buffer_load_dwordx4 v[{PFB + 4 * buf}:{PFB + 4 * buf + 3}], v{V_PF}, s[{S_PF}:{S_PF + 3}], s{S_PFO} offen")
        k(f"s_add_u32 s{S_PFO}, s{S_PFO}, s{S_PFS}")

    def kv(s, which):
        k(f"s_add_u32 m0, s{S_WB}, {s * SLOT + which * 8192}")
        k(f"s_mov_b32 s{S_OFF}, {s * 8192}")
        sr = S_VS if which else S_KS
        k(f"buffer_load_dwordx4 v{V_DO}, s[{sr}:{sr + 3}], s{S_OFF} offen lds")

    kv(0, 0)
    k(f"buffer_load_dwordx4 v[{Q}:{Q + 3}], v{V_RB}, s[{S_QS}:{S_QS + 3}], s{S_T + 4} offen")
    k(f"buffer_load_dwordx4 v[{Q + 4}:{Q + 7}], v{V_RB}, s[{S_QS}:{S_QS + 3}], s{S_T + 4} offen offset:1024")
    kv(0, 1)
    k.stamp(1)
    k(f"""
    v_lshrrev_b32 v{T}, 4, v{V_LANE}
    v_lshrrev_b32 v{T + 1}, 2, v{V_LANE}
    v_xor_b32 v{T}, v{T}, v{T + 1}
    v_and_b32 v{T}, 1, v{T}
    v_mov_b32 v{T + 1}, 0x3f803f80
    v_cmp_eq_u32 vcc, 0, v{T}
    v_and_b32 v{T + 2}, 15, v{V_LANE}
    v_lshrrev_b32 v{T + 3}, 1, v{T + 2}
    v_cndmask_b32 v{SEL}, 0, v{T + 1}, vcc
    v_mov_b32 v{SEL + 1}, v{SEL}
    v_mov_b32 v{SEL + 2}, v{SEL}
    v_mov_b32 v{SEL + 3}, v{SEL}
    v_and_b32 v{T + 2}, 1, v{T + 2}
    v_lshlrev_b32 v{T + 2}, 4, v{T + 2}
    v_mov_b32 v{T + 4}, 0x3f80
    v_lshlrev_b32 v{T + 2}, v{T + 2}, v{T + 4}
    """)
    for d in range(4):
        k(f"v_cmp_eq_u32 vcc, {d}, v{T + 3}")
        k(f"v_mov_b32 v{CSA + d}, 0")
        k(f"v_mov_b32 v{LL + d}, 0")
        k(f"v_cndmask_b32 v{SEL2 + d}, 0, v{T + 2}, vcc")
    for r in range(16):
        k(f"v_mov_b32 v{O + r}, 0")
    for r in range(8):
        k(f"v_mov_b32 v{P + r}, 0")
        k(f"v_mov_b32 v{PFB + r}, 0")
    k(f"s_mov_b32 s{S_WSLOT}, {(RL - 1) * SLOT}")
    k(f"s_mov_b32 s{S_RSLOT}, 0")
    k(f"s_mov_b32 s{S_CNT}, 0")
    k(f"v_mov_b32 v{V_CUR}, v{V_RB}")
    k.stamp(2)
    k(f"s_waitcnt vmcnt(0)")
    k.stamp(3)
    k("s_barrier")
    k(f"ds_read_b128 v[{KF}:{KF + 3}], v{V_CUR}")
    k(f"ds_read_b128 v[{KF + 4}:{KF + 7}], v{V_CUR} offset:1024")
    kv(1, 0)
    k("s_waitcnt lgkmcnt(0)")
    k(f"{M32} {vr(S0, 16)}, {vr(KF, 4)}, {vr(Q, 4)}, 0")
    k(f"{M32} {vr(S0, 16)}, {vr(KF + 4, 4)}, {vr(Q + 4, 4)}, {vr(S0, 16)}")
    kv(1, 1)
    kv(2, 0)
    kv(2, 1)
    k(f"s_mov_b32 s{S_OFF}, {(RL - 1) * 8192}")
    k("s_nop 3")
    k(f"v_max3_f32 v{T}, v{S0}, v{S0 + 1}, v{S0 + 2}")
    for r in range(3, 15, 2):
        k(f"v_max3_f32 v{T}, v{T}, v{S0 + r}, v{S0 + r + 1}")
    k(f"v_max_f32 v{T}, v{T}, v{S0 + 15}")
    k(f"v_mov_b32 v{T + 1}, v{T}")
    k("s_nop 1")
    k(f"v_permlane32_swap_b32 v{T}, v{T + 1}")
    k("s_nop 1")
    k(f"v_max_f32 v{T}, v{T}, v{T + 1}")
    for r in range(16):
        k(f"v_sub_f32 v{NEGM + r}, 0, v{T}")
    k("s_nop 1")
    k(f"{M32} {vr(S0, 16)}, {vr(KF, 4)}, {vr(Q, 4)}, {vr(NEGM, 16)}")
    k(f"{M32} {vr(S0, 16)}, {vr(KF + 4, 4)}, {vr(Q + 4, 4)}, {vr(S0, 16)}")
    k(f"ds_read_b128 v[{KF}:{KF + 3}], v{V_CUR} offset:2048")
    k(f"ds_read_b128 v[{VF + 4}:{VF + 7}], v{V_CUR} offset:{8192 + 1024}")
    k(f"ds_read_b128 v[{KF + 4}:{KF + 7}], v{V_CUR} offset:{2048 + 1024}")
    k(f"ds_read_b128 v[{VF}:{VF + 3}], v{V_CUR} offset:8192")
    k("s_nop 7")
    k("s_nop 3")

    def ex(b, r0, n):
        for r in range(r0, r0 + n):
            k(f"v_exp_f32 v{b + r}, v{b + r}")

    def cv(b, q0, n):
        for q in range(q0, q0 + n):
            k(f"v_cvt_pk_bf16_f32 v{P + q}, v{b + 2 * q}, v{b + 2 * q + 1}")

    k.stamp(4)
    k.label("loop")
    for st in range(2):
        cur, nxt = (V_CUR, V_NXT) if st == 0 else (V_NXT, V_CUR)
        for tt in range(4):
            cb, nb = SB[tt % 2], SB[(tt + 1) % 2]
            if tt == 2:
                k(f"s_waitcnt vmcnt(3)")
                k("s_barrier")

            def kaddr(dt, half):
                t2 = tt + dt
                return (cur, t2 * 2048 + half * 1024) if t2 < 4 else (nxt, (t2 - 4) * 2048 + half * 1024)

            k(f"s_setprio {3 - (tt + 2) % 4}  ; PRIO")
            k("s_waitcnt lgkmcnt(2)")
            k(f"{M32} {vr(nb, 16)}, {vr(KF, 4)}, {vr(Q, 4)}, {vr(NEGM, 16)}")
            a, o = kaddr(2, 0)
            k(f"ds_read_b128 v[{KF}:{KF + 3}], v{a} offset:{o}")
            ex(cb, 0, 4)
            k(f"{M32} {vr(O, 16)}, {vr(VF + 4, 4)}, {vr(P + 4, 4)}, {vr(O, 16)}")
            a, o = kaddr(0, 1)
            k(f"ds_read_b128 v[{VF + 4}:{VF + 7}], v{a} offset:{o + 8192}")
            if tt == 2:
                k(f"buffer_load_dwordx4 v{V_DO}, s[{S_KS}:{S_KS + 3}], s{S_OFF} offen lds")
            if tt == 3:
                k(f"buffer_load_dwordx4 v{V_DO}, s[{S_VS}:{S_VS + 3}], s{S_OFF} offen lds")
            ex(cb, 4, 3)
            cv(cb, 0, 2)
            k(f"{M16} {vr(LL, 4)}, {vr(SEL, 4)}, {vr(P + 4, 4)}, {vr(LL, 4)}")
            ex(cb, 7, 2)
            k("s_waitcnt lgkmcnt(2)")
            k(f"{M32} {vr(nb, 16)}, {vr(KF + 4, 4)}, {vr(Q + 4, 4)}, {vr(nb, 16)}")
            a, o = kaddr(2, 1)
            k(f"ds_read_b128 v[{KF + 4}:{KF + 7}], v{a} offset:{o}")
            cv(cb, 2, 2)
            if tt == 1:
                k(f"s_add_u32 s{S_RSLOT}, s{S_RSLOT}, {SLOT}")
                k(f"s_and_b32 s{S_RSLOT}, s{S_RSLOT}, {RL * SLOT - 1}")
                k(f"v_add_u32 v{nxt}, s{S_RSLOT}, v{V_RB}")
                k(f"s_add_u32 m0, s{S_WSLOT}, s{S_WB}")
            if tt == 2:
                k(f"s_add_u32 m0, m0, 8192")
                k(f"s_add_u32 s{S_WSLOT}, s{S_WSLOT}, {SLOT}")
                k(f"s_and_b32 s{S_WSLOT}, s{S_WSLOT}, {RL * SLOT - 1}")
            if tt == 3:
                k(f"s_add_u32 s{S_OFF}, s{S_OFF}, 8192")
            ex(cb, 9, 3)
            k(f"{M32} {vr(O, 16)}, {vr(VF, 4)}, {vr(P, 4)}, {vr(O, 16)}")
            a, o = kaddr(1, 0)
            k(f"ds_read_b128 v[{VF}:{VF + 3}], v{a} offset:{o + 8192}")
            ex(cb, 12, 4)
            k(f"{M16} {vr(LL, 4)}, {vr(SEL, 4)}, {vr(P, 4)}, {vr(LL, 4)}")
            if tt == 3 and st == 1:
                k(f"s_add_u32 s{S_CNT}, s{S_CNT}, 1")
                k(f"s_cmp_lt_u32 s{S_CNT}, 4")
            cv(cb, 4, 2)
            if tt == 0:
                k(f"{M16} {vr(CSA, 4)}, {vr(SEL2, 4)}, {vr(PFB + 4 * st, 4)}, {vr(CSA, 4)}")
                pf(st)
            cv(cb, 6, 2)
    k(f"s_cbranch_scc1 {k.L('loop')}")
    k(f"s_cmp_eq_u32 s{S_CNT}, 4")
    k(f"s_cbranch_scc1 {k.L('sw_down')}")
    k(f"s_cmp_eq_u32 s{S_CNT}, 5")
    k(f"s_cbranch_scc1 {k.L('sw_store')}")
    k(f"s_cmp_eq_u32 s{S_CNT}, 6")
    k(f"s_cbranch_scc1 {k.L('sw_wo')}")
    k(f"s_cmp_eq_u32 s{S_CNT}, 7")
    k(f"s_cbranch_scc1 {k.L('loop')}")
    k(f"s_branch {k.L('exit')}")
    k.label("sw_down")
    k(f"s_mov_b32 s{S_PF}, s{S_WD}")
    k(f"s_mov_b32 s{S_PF + 1}, s{S_WD + 1}")
    k(f"s_mov_b32 s{S_PF + 2}, {F * D * 2}")
    k(f"s_lshl_b32 s{S_PFO}, s2, 3")
    k(f"s_add_u32 s{S_PFO}, s{S_PFO}, s{S_WAVE}")
    k(f"s_lshl_b32 s{S_PFO}, s{S_PFO}, 12")
    k(f"s_mov_b32 s{S_PFS}, 1024")
    k(f"v_mov_b32 v{V_PF}, v{V_RB}")
    k(f"s_branch {k.L('loop')}")
    k.label("sw_wo")
    k(f"s_mov_b32 s{S_PF}, s{S_WO}")
    k(f"s_mov_b32 s{S_PF + 1}, s{S_WO + 1}")
    k(f"s_mov_b32 s{S_PF + 2}, {D * D * 2}")
    k(f"s_lshl_b32 s{S_PFO}, s{S_IDX}, 3")
    k(f"s_add_u32 s{S_PFO}, s{S_PFO}, s{S_WAVE}")
    k(f"s_lshl_b32 s{S_PFO}, s{S_PFO}, 13")
    k(f"s_and_b32 s{S_T}, s{S_XCD}, 1")
    k(f"s_lshl_b32 s{S_T}, s{S_T}, 10")
    k(f"s_add_u32 s{S_PFO}, s{S_PFO}, s{S_T}")
    k(f"s_mov_b32 s{S_PFS}, 2048")
    k(f"s_branch {k.L('loop')}")
    k.label("sw_store")
    k(f"s_cmp_eq_u32 s{S_WAVE}, 7")
    k(f"s_cbranch_scc1 {k.L('loop')}")
    srd(k, S_OS, S_WS, WS_CSP, 16 * 2 * F * 4)
    for d in range(4):
        k(f"v_add_f32_dpp v{T + 4 + d}, v{CSA + d}, v{CSA + d} row_ror:8 row_mask:0xf bank_mask:0xf")
    k(f"v_and_b32 v{T}, 7, v{V_LANE}")
    k(f"v_lshlrev_b32 v{T}, 5, v{T}")
    k(f"v_and_b32 v{T + 1}, 16, v{V_LANE}")
    k(f"v_add_u32 v{T}, v{T}, v{T + 1}")
    k("s_mov_b32 exec_hi, 0")
    k(f"buffer_store_dwordx4 v[{T + 4}:{T + 7}], v{T}, s[{S_OS}:{S_OS + 3}], s{S_CSO} offen sc1")
    k("s_mov_b64 exec, -1")
    k(f"s_branch {k.L('loop')}")
    k.label("exit")
    k.stamp(5)
    k.stamp(6)
    k("s_waitcnt lgkmcnt(0)")
    k("s_nop 1")
    k(f"{M32} {vr(O, 16)}, {vr(VF + 4, 4)}, {vr(P + 4, 4)}, {vr(O, 16)}")
    k(f"{M16} {vr(LL, 4)}, {vr(SEL, 4)}, {vr(P + 4, 4)}, {vr(LL, 4)}")
    srd(k, S_OS, S_WS, WS_O, S * D * 2)
    k(f"s_lshl_b32 s{S_T}, s{S_QT}, 16")
    k(f"s_lshl_b32 s{S_T + 1}, s{S_HEAD}, 11")
    k(f"s_add_u32 s{S_T}, s{S_T}, s{S_T + 1}")
    k("s_nop 7")
    k("s_nop 7")
    k(f"v_rcp_f32 v{T}, v{LL}")
    k("s_nop 0")
    for r in range(16):
        k(f"v_mul_f32 v{O + r}, v{O + r}, v{T}")
    for q in range(8):
        k(f"v_cvt_pk_bf16_f32 v{P + q}, v{O + 2 * q}, v{O + 2 * q + 1}")
    k(f"buffer_store_dwordx4 v[{P}:{P + 3}], v{V_RB}, s[{S_OS}:{S_OS + 3}], s{S_T} offen sc1")
    k(f"buffer_store_dwordx4 v[{P + 4}:{P + 7}], v{V_RB}, s[{S_OS}:{S_OS + 3}], s{S_T} offen offset:1024 sc1")
    k.stamp(7)
    k.label("done")
    k("s_endpgm")
    return k
```

```python
import sys, math

S, D, H, DH, F = 2048, 1024, 32, 32, 3584
MB = 1 << 20
WS_XN = 0
WS_Q = 4 * MB
WS_K = 8 * MB
WS_V = 12 * MB
WS_O = 16 * MB
WS_H = 20 * MB
WS_HN = 24 * MB
WS_ACT = 28 * MB
WS_CSP = 44 * MB
WS_AUG = 45 * MB
WS_ST2 = 46 * MB
WS_ST1 = 47 * MB
WS_CS1 = 48 * MB
KA_X, KA_WQKV, KA_WO, KA_BX, KA_WG, KA_WU, KA_WD, KA_OUT, KA_DBG, KA_WS = [8 * i for i in range(10)]

LOG2E = 1.4426950408889634
import os
STAMP = bool(os.environ.get('STAMP'))
STAMP_IDX = {}


def f32bits(x):
    import struct
    return struct.unpack("<I", struct.pack("<f", x))[0]


class K:
    def __init__(self, name, grid, block, lds, nvgpr, nagpr=0, nsgpr=96):
        self.name, self.grid, self.block, self.lds = name, grid, block, lds
        self.nvgpr, self.nagpr, self.nsgpr = nvgpr, nagpr, nsgpr
        self.lines = []

    def __call__(self, s):
        for l in s.split("\n"):
            l = l.strip()
            if l:
                self.lines.append(l if l.endswith(":") else "    " + l)

    def label(self, l):
        self.lines.append(f"{self.name}_{l}:")

    def L(self, l):
        return f"{self.name}_{l}"

    def text(self):
        lines = list(self.lines)
        if STAMP:
            idx = self.idx
            pre = ["    s_memtime s[80:81]", "    s_memrealtime s[82:83]", "    s_load_dwordx2 s[88:89], s[0:1], 72", "    s_mov_b32 s90, s2",
                   "    v_lshrrev_b32 v1, 6, v0", "    s_nop 1", "    v_readfirstlane_b32 s91, v1", "    s_waitcnt lgkmcnt(0)"]
            post = ["    s_waitcnt vmcnt(0) lgkmcnt(0)", "    s_memtime s[84:85]", "    s_memrealtime s[86:87]", "    s_waitcnt lgkmcnt(0)",
                    "    s_lshl_b32 s90, s90, 3", "    s_add_u32 s90, s90, s91", "    s_lshl_b32 s90, s90, 6",
                    f"    s_add_u32 s90, s90, {64 * MB + idx * 262144}", "    s_add_u32 s88, s88, s90", "    s_addc_u32 s89, s89, 0",
                    "    v_mov_b32 v0, 0"]
            for i in range(8):
                post.append(f"    v_mov_b32 v1, s{80 + i}")
                post.append(f"    global_store_dword v0, v1, s[88:89] offset:{4 * i}")
            for i in range(8):
                post.append(f"    v_mov_b32 v1, s{60 + 2 * i}")
                post.append(f"    global_store_dword v0, v1, s[88:89] offset:{32 + 4 * i}")
            post.append("    s_waitcnt vmcnt(0)")
            j = lines.index(f"{self.name}_done:")
            lines = pre + lines[:j] + post + lines[j:]
        lines = [l for l in lines if STAMP or "STAMP" not in l]
        return (f".globl {self.name}\n.p2align 8\n.type {self.name},@function\n{self.name}:\n"
                + "\n".join(lines) + "\n")

    def stamp(self, i):
        self.lines.append(f"    s_memtime s[{60 + 2 * i}:{61 + 2 * i}]  ; STAMP")
        self.lines.append(f"    s_waitcnt lgkmcnt(0)  ; STAMP")

    def desc(self):
        acc = (self.nvgpr + 3) // 4 * 4
        nfv = acc + self.nagpr if self.nagpr else self.nvgpr
        return f""".p2align 6
.amdhsa_kernel {self.name}
  .amdhsa_next_free_vgpr {nfv}
  .amdhsa_next_free_sgpr {self.nsgpr}
  .amdhsa_accum_offset {acc}
  .amdhsa_group_segment_fixed_size 0
  .amdhsa_kernarg_size 80
  .amdhsa_user_sgpr_count 2
  .amdhsa_user_sgpr_kernarg_segment_ptr 1
  .amdhsa_system_sgpr_workgroup_id_x 1
.end_amdhsa_kernel
"""

    def launch(self):
        return f"; @launch kernel={self.name} grid=({self.grid},1,1) block=({self.block},1,1) lds={self.lds}"


def vr(b, n=1, f="v"):
    return f"{f}{b}" if n == 1 else f"{f}[{b}:{b + n - 1}]"


def srd(k, dst, ptr, off, nbytes, off_sgpr=None):
    if off:
        k(f"s_add_u32 s{dst}, s{ptr}, {off}")
        k(f"s_addc_u32 s{dst + 1}, s{ptr + 1}, 0")
    else:
        k(f"s_mov_b32 s{dst}, s{ptr}")
        k(f"s_mov_b32 s{dst + 1}, s{ptr + 1}")
    if off_sgpr is not None:
        k(f"s_add_u32 s{dst}, s{dst}, s{off_sgpr}")
        k(f"s_addc_u32 s{dst + 1}, s{dst + 1}, 0")
    k(f"s_mov_b32 s{dst + 2}, {nbytes}")
    k(f"s_mov_b32 s{dst + 3}, 0x20000")


def gen_ln(name, first):
    k = K(name, 256, 256, 256, 80)
    k(f"""
    s_load_dwordx2 s[4:5], s[0:1], {KA_X}
    s_load_dwordx2 s[6:7], s[0:1], {KA_WS}
    s_cmp_ge_u32 s2, 256
    s_cbranch_scc1 {k.L('done')}
    v_and_b32 v1, 7, v0               ; r8
    v_lshrrev_b32 v2, 6, v0           ; wave
    v_bfe_u32 v3, v0, 3, 3            ; lane>>3
    v_lshl_add_u32 v3, v2, 5, v3
    s_lshr_b32 s8, s2, 2              ; mt
    s_lshl_b32 s8, s8, 16
    s_and_b32 s9, s2, 3
    s_lshl_b32 s9, s9, 7              ; (b&3)*8*16
    s_add_u32 s8, s8, s9
    v_lshrrev_b32 v4, 1, v3
    v_lshlrev_b32 v4, 10, v4
    v_and_b32 v5, 1, v3
    v_lshl_add_u32 v4, v5, 9, v4
    v_lshl_add_u32 v4, v1, 4, v4
    v_add_u32 v4, s8, v4
    s_mov_b32 s20, 4096
    s_mov_b32 s21, 8192
    s_mov_b32 s22, 12288
    s_waitcnt lgkmcnt(0)
    """)
    if first:
        srd(k, 12, 4, 0, S * D * 2)
        srd(k, 16, 6, WS_XN, S * D * 2)
        k(f"""
        s_lshl_b32 s10, s2, 14            ; b*8 rows*2048
        v_lshlrev_b32 v5, 11, v1
        v_lshl_add_u32 v5, v3, 4, v5
        v_add_u32 v5, s10, v5
        """)
        for i in range(4):
            k(f"buffer_load_dwordx4 v[{8 + 4 * i}:{11 + 4 * i}], v5, s[12:15], 0 offen offset:{128 * i}")
    else:
        srd(k, 12, 6, WS_H, S * D * 2)
        srd(k, 16, 6, WS_HN, S * D * 2)
        for i in range(4):
            so = ["0", "s20", "s21", "s22"][i]
            k(f"buffer_load_dwordx4 v[{8 + 4 * i}:{11 + 4 * i}], v4, s[12:15], {so} offen")
    k("v_mov_b32 v6, 0")
    k("v_mov_b32 v7, 0")
    k("s_mov_b32 s23, 0xffff0000")
    for i in range(4):
        k(f"s_waitcnt vmcnt({3 - i})")
        for d in range(4):
            src = 8 + 4 * i + d
            lo, hi = 32 + 8 * i + 2 * d, 33 + 8 * i + 2 * d
            k(f"v_lshlrev_b32 v{lo}, 16, v{src}")
            k(f"v_and_b32 v{hi}, s23, v{src}")
            k(f"v_add_f32 v6, v6, v{lo}")
            k(f"v_fmac_f32 v7, v{lo}, v{lo}")
            k(f"v_add_f32 v6, v6, v{hi}")
            k(f"v_fmac_f32 v7, v{hi}, v{hi}")
    k("""
    s_nop 1
    v_add_f32_dpp v6, v6, v6 row_ror:8 row_mask:0xf bank_mask:0xf
    v_add_f32_dpp v7, v7, v7 row_ror:8 row_mask:0xf bank_mask:0xf
    s_nop 1
    v_mov_b32 v24, v6
    v_mov_b32 v25, v7
    s_nop 1
    v_permlane16_swap_b32 v6, v24
    v_permlane16_swap_b32 v7, v25
    s_nop 1
    v_add_f32 v6, v6, v24
    v_add_f32 v7, v7, v25
    s_nop 0
    v_mov_b32 v24, v6
    v_mov_b32 v25, v7
    s_nop 1
    v_permlane32_swap_b32 v6, v24
    v_permlane32_swap_b32 v7, v25
    s_nop 1
    v_add_f32 v6, v6, v24
    v_add_f32 v7, v7, v25
    v_lshlrev_b32 v26, 5, v1
    v_lshl_add_u32 v27, v2, 3, v26
    ds_write_b64 v27, v[6:7]
    s_waitcnt lgkmcnt(0)
    s_barrier
    ds_read_b128 v[64:67], v26
    ds_read_b128 v[68:71], v26 offset:16
    s_waitcnt lgkmcnt(0)
    v_add_f32 v6, v64, v66
    v_add_f32 v7, v65, v67
    v_add_f32 v24, v68, v70
    v_add_f32 v25, v69, v71
    v_add_f32 v6, v6, v24
    v_add_f32 v7, v7, v25
    v_mul_f32 v6, 0x3a800000, v6       ; mean
    v_mul_f32 v7, 0x3a800000, v7       ; E[x^2]
    v_fma_f32 v7, -v6, v6, v7          ; var
    v_max_f32 v7, 0, v7
    v_cvt_pk_bf16_f32 v24, v6, v7
    v_lshlrev_b32 v6, 16, v24          ; mean_bf
    v_and_b32 v7, s23, v24             ; var_bf
    v_add_f32 v7, 0x3727c5ac, v7       ; + 1e-5
    v_cvt_pk_bf16_f32 v24, v7, v7
    v_and_b32 v7, s23, v24
    v_sqrt_f32 v7, v7
    s_nop 0
    v_cvt_pk_bf16_f32 v24, v7, v7
    v_and_b32 v7, s23, v24
    v_rcp_f32 v7, v7
    s_nop 0
    """)
    for i in range(4):
        for d in range(4):
            lo, hi = 32 + 8 * i + 2 * d, 33 + 8 * i + 2 * d
            dst = 8 + 4 * i + d
            k(f"v_sub_f32 v{lo}, v{lo}, v6")
            k(f"v_sub_f32 v{hi}, v{hi}, v6")
            k(f"v_cvt_pk_bf16_f32 v24, v{lo}, v{hi}")
            k(f"v_lshlrev_b32 v{lo}, 16, v24")
            k(f"v_and_b32 v{hi}, s23, v24")
            k(f"v_mul_f32 v{lo}, v{lo}, v7")
            k(f"v_mul_f32 v{hi}, v{hi}, v7")
            k(f"v_cvt_pk_bf16_f32 v{dst}, v{lo}, v{hi}")
        so = ["0", "s20", "s21", "s22"][i]
        k(f"buffer_store_dwordx4 v[{8 + 4 * i}:{11 + 4 * i}], v4, s[16:19], {so} offen")
    k.label("done")
    k("s_endpgm")
    return k


def cfg(**kw):
    c = GemmCfg()
    c.__dict__.update(kw)
    return c


def build(kernels, path):
    hdr = open("sequential_preLN__mha_block__glu_gated_glu__prompt.s.ref").read().split("\n")
    hdr = [l for l in hdr if l.startswith(";") and "@launch" not in l and "Override" not in l and "grid=ceil" not in l]
    out = "\n".join(hdr) + "\n" + "\n".join(k.launch() for k in kernels) + "\n"
    out += '.amdgcn_target "amdgcn-amd-amdhsa--gfx950"\n.text\n'
    seen = []
    for k in kernels:
        if k.name not in seen:
            k.idx = len(seen)
            out += k.text()
            seen.append(k.name)
    out += '.section .rodata,"a"\n'
    seen = []
    for k in kernels:
        if k.name not in seen:
            out += k.desc()
            seen.append(k.name)
    open(path, "w").write(out)


class GemmCfg:
    pass
```

```python
from gen_common import *
from engine import *

M32 = "v_mfma_f32_32x32x16_bf16"
SC = " sc1"


def rnd_hi(dst, src, smask):
    return [f"v_cvt_pk_bf16_f32 v{dst}, v{src}, v{src}", f"v_and_b32 v{dst}, s{smask}, v{dst}"]


def ln_scalars(b, t, sig, rs, x, smask, L):
    o = [f"v_mov_b32 v{t}, v{b}", f"v_mov_b32 v{t + 1}, v{b + 1}", "s_nop 1",
         f"v_permlane32_swap_b32 v{b}, v{t}", f"v_permlane32_swap_b32 v{b + 1}, v{t + 1}", "s_nop 1",
         f"v_add_f32 v{b}, v{b}, v{t}", f"v_add_f32 v{b + 1}, v{b + 1}, v{t + 1}",
         f"v_mul_f32 v{b}, 0xba800000, v{b}",
         f"v_mul_f32 v{b + 1}, 0x3a800000, v{b + 1}",
         f"v_fma_f32 v{b + 1}, -v{b}, v{b}, v{b + 1}",
         f"v_max_f32 v{b + 1}, 0, v{b + 1}"]
    o += rnd_hi(b + 1, b + 1, smask)
    o += [f"v_add_f32 v{b + 1}, 0x3727c5ac, v{b + 1}"]
    o += rnd_hi(b + 1, b + 1, smask)
    o += [f"v_sqrt_f32 v{b + 1}, v{b + 1}", "s_nop 0"]
    o += rnd_hi(sig, b + 1, smask)
    o += [f"v_rcp_f32 v{rs}, v{sig}"]
    o += rnd_hi(t, b, smask)
    o += [f"v_sub_f32 v{t + 1}, v{b}, v{t}"]
    o += rnd_hi(t + 2, t + 1, smask)
    o += [f"v_sub_f32 v{t + 3}, v{t + 1}, v{t + 2}",
          f"v_cvt_pk_bf16_f32 v{x}, v{t}, v{t + 2}",
          f"v_cvt_pk_bf16_f32 v{x + 2}, v{t}, v{t + 3}",
          f"v_cmp_gt_u32 vcc, 32, v{L}",
          f"v_mov_b32 v{x + 3}, 0", "s_nop 0",
          f"v_cndmask_b32 v{x}, 0, v{x}, vcc",
          f"v_cndmask_b32 v{x + 2}, 0, v{x + 2}, vcc",
          f"v_mov_b32 v{x + 1}, v{x}"]
    return o


def cs_split(c, t, f, smask):
    o = rnd_hi(t, c, smask)
    o += [f"v_sub_f32 v{t + 1}, v{c}, v{t}"]
    o += rnd_hi(t + 2, t + 1, smask)
    o += [f"v_sub_f32 v{t + 1}, v{t + 1}, v{t + 2}",
          f"v_cvt_pk_bf16_f32 v{f}, v{t}, v{t}",
          f"v_cvt_pk_bf16_f32 v{f + 1}, v{t + 2}, v{t + 2}",
          f"v_cvt_pk_bf16_f32 v{f + 2}, v{t + 1}, v{t}",
          f"v_mov_b32 v{f + 3}, 0"]
    return o


def srd_lines(dst, ptr, off, nbytes):
    o = []
    if off:
        o += [f"s_add_u32 s{dst}, s{ptr}, {off}\ns_addc_u32 s{dst + 1}, s{ptr + 1}, 0"]
    else:
        o += [f"s_mov_b32 s{dst}, s{ptr}", f"s_mov_b32 s{dst + 1}, s{ptr + 1}"]
    return o + [f"s_mov_b32 s{dst + 2}, {nbytes}", f"s_mov_b32 s{dst + 3}, 0x20000"]


def gen_gemm(c):
    MT, NT, BK, KK = c.MT, c.NT, c.BK, c.K
    SS = BK // 16
    NST = KK // BK
    RA = c.RA
    PW, RL, UN = 3, 4, 4
    DW = c.DW
    NF = NT * DW
    kind = c.kind
    alds = kind == "qkv"
    assert NST % UN == 0 and UN % RA == 0
    if kind == "gu":
        UPOFF = BK * 224 + 128
        SLOT = UPOFF + BK * 224
        NDW = (BK * 14 * 2) // 64 // 4
        RSTR, NH, MAXOFF = 224, 1, BK * 224
    else:
        NP = NT // 2
        SLOT = NP * BK * 128
        NDW = NP * (BK // 8) // 4
        RSTR, NH, MAXOFF = 128, 2, SLOT
    lds = SLOT * RL
    ABASE, ASLOT = lds, 128 * BK * 2
    NDA = 4 if alds else 0
    if alds:
        lds += ASLOT * RL
    NDMA = NDW + NDA
    SPG = max(1, min(RL, (65536 - MAXOFF) // SLOT + 1))
    while RL % SPG:
        SPG -= 1
    NG = RL // SPG
    nA = SS * MT
    big = MT * NT * 16 > 128
    ACC = 0
    nacc = MT * NT * 16
    v = nacc
    V_RB = v; v += NH * NG
    V_AO = v; v += 2
    V_WO = v; v += NDMA
    V_LANE = v; v += 1
    V_AR = v; v += 4 if alds else 0
    v = (v + 3) // 4 * 4
    V_ST = v; v += 4
    V_T = v; v += 8
    if big:
        V_XF = v; v += 8
        AF, af = 0, "a"
        WF, wf = RA * nA * 4, "a"
        A_ST = WF + NF * 4
        A_AUG = A_ST + 32
        nagpr = A_AUG + NT * 4
        nv = v
    else:
        AF, af = v, "v"; v += 8 if alds else RA * nA * 4
        WF, wf = v, "v"; v += NF * 4
        V_X = v; v += 16
        V_P = v; v += 0 if alds else NT * 8
        V_CS = v; v += 16
        if alds:
            V_AUG = v; v += 24
            V_XF = v; v += 4
            V_RSR = v; v += 16
        nagpr = 0
        nv = v
    assert nv <= 256, nv
    k = K(c.name, 256, 256, lds, nv, nagpr)

    def areg(t, ss, i):
        if alds:
            return vr(AF + (ss % 2) * 4, 4, af)
        return vr(AF + (((t % RA) * SS + ss) * MT + i) * 4, 4, af)

    def wreg(slot, half=None):
        b = WF + slot * 4
        return vr(b, 4, wf) if half is None else vr(b + 2 * half, 2, wf)

    def acc(j, i):
        return ACC + (j * MT + i) * 16

    S_A = [4, 8]
    S_W = 12
    S_AOFF, S_WOFF, S_WBASE, S_MASK, S_CNT, S_WAVE, S_RB, S_CB, S_MT, S_ABASE = 16, 17, 18, 19, 20, 21, 22, 23, 24, 25
    S_P0, S_P1, S_WS, S_P2 = 26, 28, 30, 32
    S_O, S_R, S_TMP, S_EX, S_D = 36, 40, 44, 52, 56

    wptr = {"qkv": KA_WQKV, "out": KA_WO, "gu": KA_WG, "down": KA_WD}[kind]
    NW = {"qkv": 3 * D, "out": D, "gu": F, "down": D}[kind]
    k(f"s_load_dwordx2 s[{S_P0}:{S_P0 + 1}], s[0:1], {wptr}")
    k(f"s_load_dwordx2 s[{S_WS}:{S_WS + 1}], s[0:1], {KA_WS}")
    if kind == "gu":
        k(f"s_load_dwordx2 s[{S_P1}:{S_P1 + 1}], s[0:1], {KA_WU}")
    if kind == "qkv":
        k(f"s_load_dwordx2 s[{S_P1}:{S_P1 + 1}], s[0:1], {KA_DBG}")
    if kind != "gu":
        k(f"s_load_dwordx2 s[{S_P2}:{S_P2 + 1}], s[0:1], {KA_OUT if kind == 'down' else KA_X}")
    L, TT = V_LANE, V_T
    k(f"""
    s_cmp_ge_u32 s2, 256
    s_cbranch_scc1 {k.L('done')}
    v_lshrrev_b32 v{TT}, 6, v0
    v_and_b32 v{L}, 63, v0
    v_readfirstlane_b32 s{S_WAVE}, v{TT}
    s_and_b32 s{S_TMP}, s2, 7
    s_lshr_b32 s{S_TMP + 1}, s2, 3
    """)
    if kind == "qkv":
        xs, xm, isx, im, rsh, csh = 2, 3, 2, 3, 3, 2
    elif kind == "gu":
        xs, xm, isx, im, rsh, csh = 2, 3, 3, 7, 2, 3
    else:
        xs, xm, isx, im, rsh, csh = 1, 1, 3, 7, 2, 3
    k(f"""
    s_lshr_b32 s{S_RB}, s{S_TMP}, {xs}
    s_lshl_b32 s{S_RB}, s{S_RB}, {rsh}
    s_lshr_b32 s{S_TMP + 2}, s{S_TMP + 1}, {isx}
    s_add_u32 s{S_RB}, s{S_RB}, s{S_TMP + 2}
    s_and_b32 s{S_CB}, s{S_TMP}, {xm}
    s_lshl_b32 s{S_CB}, s{S_CB}, {csh}
    s_and_b32 s{S_TMP + 2}, s{S_TMP + 1}, {im}
    s_add_u32 s{S_CB}, s{S_CB}, s{S_TMP + 2}
    s_lshl_b32 s{S_MT}, s{S_RB}, 2
    s_add_u32 s{S_MT}, s{S_MT}, s{S_WAVE}
    """)
    if MT > 1:
        k(f"s_mul_i32 s{S_MT}, s{S_MT}, {MT}")
    k(f"v_lshlrev_b32 v{V_AO}, 4, v{L}")
    k(f"v_add_u32 v{V_AO + 1}, 4096, v{V_AO}")
    if kind == "gu":
        k(f"s_lshr_b32 s{S_TMP + 3}, s{S_WAVE}, 1")
        k(f"s_mul_i32 s{S_TMP + 2}, s{S_TMP + 3}, {(BK // 2) * NW * 2}")
        k(f"s_mul_i32 s{S_TMP + 4}, s{S_CB}, 224")
        k(f"s_add_u32 s{S_TMP + 2}, s{S_TMP + 2}, s{S_TMP + 4}")
        k(f"v_add_u32 v{TT + 2}, s{S_TMP + 2}, v{V_AO}")
        k(f"v_mul_u32_u24 v{TT}, 4682, v{L}")
        for i in range(NDW):
            k(f"v_add_u32 v{TT + 1}, {64 * i * 4682}, v{TT}")
            k(f"v_lshrrev_b32 v{TT + 1}, 16, v{TT + 1}")
            k(f"v_mul_u32_u24 v{TT + 1}, {NW * 2 - 224}, v{TT + 1}")
            k(f"v_add3_u32 v{V_WO + i}, v{TT + 1}, v{TT + 2}, 0" if i == 0 else f"v_add_u32 v{TT + 2}, 1024, v{TT + 2}\nv_add_u32 v{V_WO + i}, v{TT + 1}, v{TT + 2}")
        k(f"s_and_b32 s{S_TMP + 2}, s{S_WAVE}, 1")
        k(f"s_mul_i32 s{S_TMP + 2}, s{S_TMP + 2}, {UPOFF}")
        k(f"s_mul_i32 s{S_TMP + 3}, s{S_TMP + 3}, {(BK // 2) * 224}")
        k(f"s_add_u32 s{S_WBASE}, s{S_TMP + 2}, s{S_TMP + 3}")
        dma_lds = [1024 * i for i in range(NDW)]
    else:
        RPW = BK // 8 // 4
        k(f"v_lshrrev_b32 v{TT}, 3, v{L}")
        k(f"v_and_b32 v{TT + 1}, 7, v{L}")
        k(f"v_bfe_u32 v{TT + 2}, v{L}, 4, 1")
        k(f"v_lshlrev_b32 v{TT + 2}, 2, v{TT + 2}")
        k(f"v_xor_b32 v{TT + 2}, v{TT + 1}, v{TT + 2}")
        k(f"v_mul_u32_u24 v{TT + 3}, {NW * 2}, v{TT}")
        k(f"v_lshl_add_u32 v{TT + 3}, v{TT + 2}, 4, v{TT + 3}")
        k(f"s_mul_i32 s{S_TMP + 2}, s{S_WAVE}, {RPW * 8 * NW * 2}")
        k(f"s_lshl_b32 s{S_TMP + 3}, s{S_CB}, 7")
        k(f"s_add_u32 s{S_TMP + 2}, s{S_TMP + 2}, s{S_TMP + 3}")
        k(f"v_add_u32 v{V_WO}, s{S_TMP + 2}, v{TT + 3}")
        for i in range(1, NDW):
            t, r = i // RPW, i % RPW
            k(f"v_add_u32 v{V_WO + i}, {t * D * 2 + r * 8 * NW * 2}, v{V_WO}")
        k(f"s_mul_i32 s{S_WBASE}, s{S_WAVE}, {RPW * 1024}")
        dma_lds = [(i // RPW) * BK * 128 + (i % RPW) * 1024 for i in range(NDW)]
        if alds:
            k(f"v_lshrrev_b32 v{TT + 2}, 4, v{L}")
            k(f"v_xor_b32 v{TT + 2}, v{TT + 1}, v{TT + 2}")
            k(f"v_lshlrev_b32 v{TT + 3}, 11, v{TT}")
            k(f"v_lshl_add_u32 v{V_WO + NDW}, v{TT + 2}, 4, v{TT + 3}")
            k(f"v_xor_b32 v{TT + 2}, 64, v{V_WO + NDW}")
            k(f"v_add_u32 v{V_WO + NDW + 1}, 16384, v{TT + 2}")
            k(f"v_add_u32 v{V_WO + NDW + 2}, 32768, v{V_WO + NDW}")
            k(f"v_add_u32 v{V_WO + NDW + 3}, 49152, v{TT + 2}")
            k(f"s_lshl_b32 s{S_ABASE}, s{S_WAVE}, 12")
            k(f"s_add_u32 s{S_ABASE}, s{S_ABASE}, {ABASE}")
    for i in range(MT):
        if i:
            k(f"s_add_u32 s{S_TMP + 4 + i}, s{S_TMP + 4}, {KK * 64}")
        else:
            k(f"s_mul_i32 s{S_TMP + 4}, s{S_MT}, {KK * 64}")
    k("s_waitcnt lgkmcnt(0)")
    k.stamp(0)
    if kind == "gu":
        k(f"s_bitcmp1_b32 s{S_WAVE}, 0")
        k(f"s_cselect_b32 s{S_W}, s{S_P1}, s{S_P0}")
        k(f"s_cselect_b32 s{S_W + 1}, s{S_P1 + 1}, s{S_P0 + 1}")
        k(f"s_mov_b32 s{S_W + 2}, {KK * NW * 2}")
        k(f"s_mov_b32 s{S_W + 3}, 0x20000")
    else:
        srd(k, S_W, S_P0, 0, KK * NW * 2)
    for i in range(MT):
        if alds:
            srd(k, S_A[0], S_P2, 0, 65536, off_sgpr=S_TMP + 4)
        else:
            srd(k, S_A[i], S_WS, c.a_off, KK * 64, off_sgpr=S_TMP + 4 + i)

    PER = NT * MT
    NM = SS * PER
    NG_ = NST * NM
    pre = [[] for _ in range(NG_)]
    post = [[] for _ in range(NG_)]
    mfma = [None] * NG_
    HS, S2 = (4, 8) if c.kperm else (8, 4)
    ASTEP = BK * 2 if alds else BK * 64
    WSTEP = BK * NW * 2
    cur = {"A": 0, "W": 0}

    def step(kindc, b):
        reg, st = (S_AOFF, ASTEP) if kindc == "A" else (S_WOFF, WSTEP)
        if cur[kindc] == b:
            return []
        d = b - cur[kindc]
        cur[kindc] = b
        return [f"s_add_u32 s{reg}, s{reg}, {d * st}"]

    def make_vm(op):
        if op[0] == "W":
            _, b, i = op
            if i < NDW:
                return VM(op, f"buffer_load_dwordx4 v{V_WO + i}, s[{S_W}:{S_W + 3}], s{S_WOFF} offen lds",
                          [f"s_add_u32 m0, s{S_WBASE}, {(b % RL) * SLOT + dma_lds[i]}"] + step("W", b))
            return VM(op, f"buffer_load_dwordx4 v{V_WO + i}, s[{S_A[0]}:{S_A[0] + 3}], s{S_AOFF} offen lds",
                      [f"s_add_u32 m0, s{S_ABASE}, {(b % RL) * ASLOT + (i - NDW) * 1024}"] + step("A", b))
        _, b, ss, i = op
        off = ss * 1024
        return VM(op, f"buffer_load_dwordx4 {areg(b, ss, i)}, v{V_AO + (off >> 12)}, s[{S_A[i]}:{S_A[i] + 3}], s{S_AOFF} offen offset:{off & 4095}",
                  step("A", b))

    def tr_read(fslot, t, ss, j, half):
        slot = t % RL
        if kind == "gu":
            off, h = (ss * 16 + S2 * half) * RSTR + j * 32, 0
        else:
            off, h = (j // 2) * BK * 128 + (ss * 16 + S2 * half) * RSTR, j % 2
        off += (slot % SPG) * SLOT
        assert off < 65536
        return f"ds_read_b64_tr_b16 {wreg(fslot, half)}, v{V_RB + (slot // SPG) * NH + h} offset:{off}"

    def a_read(t, ss):
        return f"ds_read_b128 {areg(t, ss, 0)}, v{V_AR + ss} offset:{(t % RL) * ASLOT}"

    frags = [(t, ss, j) for t in range(NST) for ss in range(SS) for j in range(NT)]
    first_reads = []
    bar_at = {}
    for q, (t, ss, j) in enumerate(frags):
        G0 = q * MT
        rd = [DS(("W", q, h), tr_read(q % NF, t, ss, j, h)) for h in range(2)]
        if q < NF:
            first_reads += rd
        else:
            Gr = (q - NF) * MT + MT - 1
            post[Gr] += rd
            if Gr // NM < t:
                bar_at[t] = min(bar_at.get(t, 1 << 30), Gr)
        pre[G0].append(NEEDD(("W", q)))
        for i in range(MT):
            a, w = areg(t, ss, i), wreg(q % NF)
            x, y = (a, w) if (kind == "qkv" and j >= 4) else (w, a)
            cin = "0" if (t == 0 and ss == 0) else vr(acc(j, i), 16)
            mfma[G0 + i] = f"{M32} {vr(acc(j, i), 16)}, {x}, {y}, {cin}"
            if j == 0:
                pre[G0 + i].append(NEEDD(("A", t, ss)) if alds else NEEDV(("A", t, ss, i)))
        if alds and j == 0:
            rd = DS(("A", t, ss), a_read(t, ss))
            if q == 0:
                first_reads.insert(0, rd)
            else:
                post[G0 - PER + 1].append(rd)
    if MT > 1:
        bar_at = {t: g - (MT - 1) for t, g in bar_at.items()}
    for t, g in bar_at.items():
        pre[g] = [NEEDV(("W", t, i)) for i in range(NDMA)] + pre[g] + [Item("bar")]
    bar_gap = bar_at[1]

    wpos = []
    for i in range(NDMA):
        p = bar_gap + int((i + 0.3) * NM / NDMA)
        while (MT > 1 and p % MT == MT - 1) or (not alds and p % PER == PER - 1):
            p += 1
        wpos.append(p)
    assert wpos[-1] < bar_gap + NM and len(set(wpos)) == NDMA, wpos
    worder = list(range(NDMA))
    if alds:
        worder = [6, 0, 1, 7, 2, 3, 8, 4, 9, 5]
    ops = []
    for b in range(NST):
        for n, i in enumerate(worder):
            ops.append(((b - PW) * NM + wpos[n], 1, ("W", b, i)))
        if not alds:
            for ss in range(SS):
                for i in range(MT):
                    ops.append(((b - RA) * NM + ss * PER + (NT - 1) * MT + i, 0, ("A", b, ss, i)))
    ops.sort()
    pre_ops = [o for o in ops if o[2][1] == 0 and o[2][0] == "W"] + [o for o in ops if o[2][1] == 0 and o[2][0] == "A"]
    queue = [o for o in ops if o[2][1] != 0]
    pre_ops2 = []
    if alds:
        pre_ops2 = [o for o in queue if o[2][1] == 1]
        queue = [o for o in queue if o[2][1] != 1]
    sim = Sim()

    def out(items):
        for l in sim.emit(items):
            k(l)

    if alds:
        k(f"s_lshl_b32 s{S_AOFF}, s{S_CB}, 7")
        k(f"s_mul_i32 s{S_WOFF}, s{S_RB}, {WSTEP}")
        cur["A"] = cur["W"] = 3
        out([VM(("X", i), make_vm(("W", 3, i)).txt, make_vm(("W", 3, i)).pre) for i in worder])
        cur["A"] = cur["W"] = 0
    k(f"s_mov_b32 s{S_AOFF}, 0")
    k(f"s_mov_b32 s{S_WOFF}, 0")
    out([make_vm(o[2]) for o in pre_ops])
    k.stamp(1)
    k(f"s_mov_b32 s{S_MASK}, 0xffff0000")
    k(f"v_bfe_u32 v{TT}, v{L}, 2, 2")
    k(f"v_lshrrev_b32 v{TT + 1}, 5, v{L}")
    k(f"v_mul_u32_u24 v{TT + 3}, {HS}, v{TT + 1}")
    k(f"v_add_u32 v{TT + 3}, v{TT + 3}, v{TT}")
    k(f"v_mul_u32_u24 v{TT + 3}, {RSTR}, v{TT + 3}")
    k(f"v_and_b32 v{TT + 2}, 3, v{L}")
    k(f"v_lshl_add_u32 v{TT + 3}, v{TT + 2}, 3, v{TT + 3}")
    k(f"v_bfe_u32 v{TT + 2}, v{L}, 4, 1")
    if kind == "gu":
        k(f"v_mul_u32_u24 v{TT + 2}, {UPOFF}, v{TT + 2}")
        k(f"v_add_u32 v{V_RB}, v{TT + 3}, v{TT + 2}")
    else:
        k(f"v_lshl_add_u32 v{TT + 3}, v{TT + 2}, 5, v{TT + 3}")
        k(f"v_bfe_u32 v{TT + 2}, v{L}, 3, 1")
        k(f"v_lshl_add_u32 v{V_RB}, v{TT + 2}, 6, v{TT + 3}")
        k(f"v_xor_b32 v{V_RB + 1}, 64, v{V_RB}")
    for g in range(1, NG):
        for h in range(NH):
            k(f"v_add_u32 v{V_RB + g * NH + h}, {g * SPG * SLOT}, v{V_RB + h}")
    V_M8 = V_ST + 3

    def spread(G0, G1, items, per=2):
        g = G0
        n = 0
        for it in items:
            if isinstance(it, str):
                it = T(it)
            post[g].append(it)
            if it.kind not in ("needv", "needd"):
                n += 1
            if n >= per:
                n = 0
                g += 1
                assert g <= G1, (g, G1)
        return g

    tail_code = []
    if alds:
        k(f"v_and_b32 v{TT}, 31, v{L}")
        k(f"v_bfe_u32 v{TT + 2}, v{L}, 1, 3")
        k(f"v_xor_b32 v{TT + 2}, v{TT + 2}, v{TT + 1}")
        k(f"v_lshlrev_b32 v{TT + 3}, 7, v{TT}")
        k(f"v_lshl_add_u32 v{TT + 3}, v{TT + 2}, 4, v{TT + 3}")
        k(f"v_add_u32 v{V_AR}, s{S_ABASE}, v{TT + 3}")
        for ss in range(1, 4):
            k(f"v_xor_b32 v{V_AR + ss}, {32 * ss}, v{V_AR}")
        k(f"s_and_b32 s{S_TMP + 2}, s{S_WAVE}, 1")
        k(f"s_lshl_b32 s{S_TMP + 2}, s{S_TMP + 2}, 6")
        k(f"v_xor_b32 v{TT + 4}, s{S_TMP + 2}, v{V_RB + NH}")
        k(f"s_lshr_b32 s{S_TMP + 3}, s{S_WAVE}, 1")
        k(f"s_lshl_b32 s{S_TMP + 3}, s{S_TMP + 3}, 13")
        k(f"v_add_u32 v{TT + 5}, s{S_TMP + 3}, v{TT + 4}")
        ONES = V_XF
        for r in range(4):
            k(f"v_mov_b32 v{ONES + r}, 0x3f803f80")
        k(f"v_mov_b32 v{V_ST}, 0")
        k(f"v_mov_b32 v{V_ST + 1}, 0")
        for l in srd_lines(S_R, S_WS, WS_ST1, 64 * 4096) + srd_lines(S_O, S_WS, WS_CS1, 16 * 12288):
            k(l)
        k.stamp(2)
        out([NEEDV(("X", i)) for i in range(NDMA)] + [Item("bar")])
        k.stamp(3)
        XA, WA, D0, D1 = 32, 48, 0, 16
        it = []
        for ss in range(4):
            it.append(DS(("xa", ss), f"ds_read_b128 v[{XA + 4 * ss}:{XA + 4 * ss + 3}], v{V_AR + ss} offset:{3 * ASLOT}"))
        for p in range(2):
            for ss in range(4):
                for h in range(2):
                    off = SLOT + (ss * 16 + S2 * h) * RSTR + (16384 if p else 0)
                    b = WA + p * 16 + ss * 4 + h * 2
                    it.append(DS(("wa", p, ss, h), f"ds_read_b64_tr_b16 v[{b}:{b + 1}], v{TT + 4 if p else TT + 5} offset:{off}"))
        for ss in range(4):
            it.append(NEEDD(("xa", ss)))
            for d in range(4):
                s_ = XA + 4 * ss + d
                if pre_ops2:
                    it.append(make_vm(pre_ops2.pop(0)[2]))
                it += [T(f"v_lshlrev_b32 v{TT}, 16, v{s_}"), T(f"v_and_b32 v{TT + 1}, s{S_MASK}, v{s_}"),
                       T(f"v_add_f32 v{V_ST}, v{V_ST}, v{TT}"), T(f"v_fmac_f32 v{V_ST + 1}, v{TT}, v{TT}"),
                       T(f"v_add_f32 v{V_ST}, v{V_ST}, v{TT + 1}"), T(f"v_fmac_f32 v{V_ST + 1}, v{TT + 1}, v{TT + 1}")]
                if d % 2 == 1:
                    n = ss * 2 + d // 2
                    p, s2_ = n // 4, n % 4
                    dd = D1 if p else D0
                    it.append(NEEDD(("wa", p, s2_)))
                    it.append(T(f"{M32} {vr(dd, 16)}, {vr(ONES, 4)}, {vr(WA + p * 16 + s2_ * 4, 4)}, {'0' if s2_ == 0 else vr(dd, 16)}"))
        it += [T(f"v_mov_b32 v{TT}, v{V_ST}"), T(f"v_mov_b32 v{TT + 1}, v{V_ST + 1}"),
               T(f"v_and_b32 v{TT + 4}, 31, v{L}"), T(f"v_lshlrev_b32 v{TT + 5}, 3, v{TT + 4}"),
               T(f"v_permlane32_swap_b32 v{V_ST}, v{TT}"), T(f"v_permlane32_swap_b32 v{V_ST + 1}, v{TT + 1}"),
               T(f"s_lshl_b32 s{S_TMP + 2}, s{S_MT}, 12"), T(f"s_lshl_b32 s{S_TMP + 3}, s{S_CB}, 8"),
               T(f"s_add_u32 s{S_TMP + 2}, s{S_TMP + 2}, s{S_TMP + 3}"),
               T(f"v_add_f32 v{TT + 2}, v{V_ST}, v{TT}"), T(f"v_add_f32 v{TT + 3}, v{V_ST + 1}, v{TT + 1}"),
               T(f"v_lshlrev_b32 v{TT + 4}, 2, v{TT + 4}"),
               VM(("ST", 0), f"buffer_store_dwordx2 v[{TT + 2}:{TT + 3}], v{TT + 5}, s[{S_R}:{S_R + 3}], s{S_TMP + 2} offen sc1"),
               T(f"s_mul_i32 s{S_TMP + 2}, s{S_RB}, 12288"), T(f"s_mul_i32 s{S_TMP + 3}, s{S_CB}, 768"),
               T(f"s_add_u32 s{S_TMP + 2}, s{S_TMP + 2}, s{S_TMP + 3}"),
               T(f"s_lshl_b32 s{S_TMP + 3}, s{S_WAVE}, 7"), T(f"s_add_u32 s{S_TMP + 3}, s{S_TMP + 3}, s{S_TMP + 2}"),
               T(f"s_and_b32 s{S_TMP + 5}, s{S_WAVE}, 1"), T(f"s_lshl_b32 s{S_TMP + 5}, s{S_TMP + 5}, 7"),
               T(f"s_add_u32 s{S_TMP + 2}, s{S_TMP + 2}, s{S_TMP + 5}"),
               VM(("ST", 1), f"buffer_store_dword v{D0}, v{TT + 4}, s[{S_O}:{S_O + 3}], s{S_TMP + 3} offen sc1"),
               VM(("ST", 2), f"buffer_store_dword v{D1}, v{TT + 4}, s[{S_O}:{S_O + 3}], s{S_TMP + 2} offen offset:512 sc1")]
        out(it)
        g2 = bar_at[2]
        pre[g2] = [NEEDV(("ST", i)) for i in range(3)] + pre[g2]
        sig = srd_lines(S_D, S_P1, 0, 64) + [
            f"s_and_b32 s{S_TMP + 2}, s2, 15", f"s_lshl_b32 s{S_TMP + 2}, s{S_TMP + 2}, 2",
            f"v_mov_b32 v{TT}, 0", f"v_mov_b32 v{TT + 1}, 1"]
        spread(g2 - 8, g2, sig, per=1)
        post[g2] += [T(f"s_cmp_lg_u32 s{S_WAVE}, 0"), T(f"s_cbranch_scc1 {k.L('nosig')}"), T("s_mov_b64 exec, 1"),
                     T(f"buffer_atomic_add v{TT + 1}, v{TT}, s[{S_D}:{S_D + 3}], s{S_TMP + 2} offen sc1"),
                     T("s_mov_b64 exec, -1"), T(f"{k.L('nosig')}:")]
        t0 = NST - 4
        poll = f"buffer_load_dword v{TT + 1}, v{TT}, s[{S_D}:{S_D + 3}], 0 offen sc1"
        post[t0 * NM] += [T(f"v_lshlrev_b32 v{TT}, 2, v{L}"), VM(("POLL",), poll)]
        g = (t0 + 1) * NM
        post[g] += [NEEDV(("POLL",)), T(f"v_cmp_eq_u32 vcc, 16, v{TT + 1}"), T("s_nop 1"), T("s_cmp_eq_u32 vcc_lo, 0xffff"),
                    T(f"s_cbranch_scc0 {k.L('spin')}"), T(f"{k.L('polled')}:")]
        tail_code += [f"{k.L('spin')}:", f"s_mov_b32 s{S_TMP + 6}, 0x8000", f"{k.L('spin1')}:", "s_sleep 8", poll, "s_waitcnt vmcnt(0)",
                      f"v_cmp_eq_u32 vcc, 16, v{TT + 1}", "s_nop 1", "s_cmp_eq_u32 vcc_lo, 0xffff", f"s_cbranch_scc1 {k.L('polled')}",
                      f"s_sub_u32 s{S_TMP + 6}, s{S_TMP + 6}, 1", f"s_cmp_lg_u32 s{S_TMP + 6}, 0", f"s_cbranch_scc1 {k.L('spin1')}",
                      f"s_branch {k.L('polled')}"]
        it = [f"v_and_b32 v{TT + 2}, 31, v{L}", f"v_lshlrev_b32 v{TT + 2}, 3, v{TT + 2}", f"v_lshrrev_b32 v{TT + 3}, 5, v{L}",
              f"v_lshl_add_u32 v{TT + 2}, v{TT + 3}, 11, v{TT + 2}", f"s_lshl_b32 s{S_TMP + 2}, s{S_MT}, 12",
              f"s_min_u32 s{S_TMP + 5}, s{S_WAVE}, 2", f"s_mul_i32 s{S_TMP + 3}, s{S_CB}, 768", f"s_lshl_b32 s{S_TMP + 6}, s{S_TMP + 5}, 8",
              f"s_add_u32 s{S_TMP + 3}, s{S_TMP + 3}, s{S_TMP + 6}"]
        spread(t0 * NM + 1, (t0 + 1) * NM, it, per=1)
        it = []
        for sl in range(16):
            it.append(VM(("CSL", sl), f"buffer_load_dword v{V_CS + sl}, v{TT}, s[{S_O}:{S_O + 3}], s{S_TMP + 3} offen sc1",
                         [f"s_add_u32 s{S_TMP + 3}, s{S_TMP + 3}, 12288"] if sl else []))
        for q in range(8):
            it.append(VM(("STL", q), f"buffer_load_dwordx2 v[{V_X + 2 * q}:{V_X + 2 * q + 1}], v{TT + 2}, s[{S_R}:{S_R + 3}], s{S_TMP + 2} offen offset:{q * 256} sc1"))
        spread(g + 1, g + NM, it, per=2)
        g = (t0 + 2) * NM + 4
        it = [NEEDV(("CSL", 15))] + [f"v_add_f32 v{V_CS}, v{V_CS}, v{V_CS + sl}" for sl in range(1, 16)]
        it += cs_split(V_CS, V_CS + 1, V_CS + 4, S_MASK)
        it += [f"s_lshl_b32 s{S_TMP + 6}, s{S_TMP + 5}, 10", f"v_add_u32 v{TT + 3}, s{S_TMP + 6}, v{V_AO}",
               DS(("AUGW",), f"ds_write_b128 v{TT + 3}, v[{V_CS + 4}:{V_CS + 7}]")]
        it += [NEEDV(("STL", 7))]
        for q in range(1, 8):
            it += [f"v_add_f32 v{V_X}, v{V_X}, v{V_X + 2 * q}", f"v_add_f32 v{V_X + 1}, v{V_X + 1}, v{V_X + 2 * q + 1}"]
        it += ln_scalars(V_X, V_X + 4, V_ST + 1, V_ST, V_XF, S_MASK, L)
        it += [f"s_lshl_b32 s{S_TMP + 6}, s{S_WAVE}, 7", f"v_and_b32 v{TT + 4}, 31, v{L}", f"v_lshlrev_b32 v{TT + 5}, 4, v{TT + 4}",
               f"v_lshlrev_b32 v{TT + 4}, 2, v{TT + 4}", f"v_add_u32 v{TT + 4}, s{S_TMP + 6}, v{TT + 4}",
               DS(("RSW",), f"ds_write_b32 v{TT + 4}, v{V_ST} offset:4096"),
               f"v_lshrrev_b32 v{TT + 6}, 5, v{L}", f"v_lshlrev_b32 v{TT + 6}, 4, v{TT + 6}", f"v_add_u32 v{TT + 6}, s{S_TMP + 6}, v{TT + 6}",
               f"v_mul_f32 v{V_ST + 2}, {f32bits(LOG2E / math.sqrt(DH)):#x}, v{V_ST}"]
        gb = spread(g, NG_ - 8, it, per=3) + 1
        pre[gb] = [NEEDD(("AUGW",)), NEEDD(("RSW",))] + pre[gb] + [Item("bar")]
        it = [DS(("AUG", j), f"ds_read_b128 v[{V_AUG + 4 * j}:{V_AUG + 4 * j + 3}], v{TT + 5} offset:{j * 512}") for j in range(6)]
        it += [DS(("RSR", a), f"ds_read_b128 v[{V_RSR + 4 * a}:{V_RSR + 4 * a + 3}], v{TT + 6} offset:{4096 + a * 32}") for a in range(4)]
        spread(gb, NG_, it, per=2)
    elif kind == "gu":
        it = srd_lines(S_R, S_WS, WS_ST2, 64 * 4096) + srd_lines(S_O, S_WS, WS_AUG, 32 * 3584) + [
            f"v_and_b32 v{TT}, 31, v{L}", f"v_lshlrev_b32 v{TT + 2}, 4, v{TT}", f"v_lshlrev_b32 v{TT}, 3, v{TT}",
            f"v_lshrrev_b32 v{TT + 1}, 5, v{L}", f"v_lshl_add_u32 v{TT}, v{TT + 1}, 11, v{TT}",
            f"s_lshl_b32 s{S_TMP + 2}, s{S_MT}, 12", f"s_add_u32 s{S_TMP + 3}, s{S_TMP + 2}, 4096", f"s_mul_i32 s{S_TMP + 4}, s{S_CB}, 3584"]
        t0 = NST - 4
        g = spread(t0 * NM, t0 * NM + 20, it, per=1)
        gs = [x for x in range((t0 + 1) * NM + bar_gap, NG_) if x % 2 == 0]
        n = 0
        for i in range(MT):
            for q in range(8):
                b = A_ST + i * 16 + q * 2
                post[gs[n]].append(VM(("STL", i, q), f"buffer_load_dwordx2 a[{b}:{b + 1}], v{TT}, s[{S_R}:{S_R + 3}], s{S_TMP + 2 + i} offen offset:{q * 256}"))
                n += 1
        for j in range(NT):
            post[gs[n]].append(VM(("AUG", j), f"buffer_load_dwordx4 a[{A_AUG + 4 * j}:{A_AUG + 4 * j + 3}], v{TT + 2}, s[{S_O}:{S_O + 3}], s{S_TMP + 4} offen offset:{j * 512}"))
            n += 1
        it = []
        for i in range(MT):
            b = A_ST + i * 16
            it += [NEEDV(("STL", i, 7)), f"v_accvgpr_read_b32 v{TT}, a{b}", f"v_accvgpr_read_b32 v{TT + 1}, a{b + 1}"]
            for q in range(1, 8):
                it += [f"v_accvgpr_read_b32 v{TT + 2}, a{b + 2 * q}", f"v_accvgpr_read_b32 v{TT + 3}, a{b + 2 * q + 1}",
                       f"v_add_f32 v{TT}, v{TT}, v{TT + 2}", f"v_add_f32 v{TT + 1}, v{TT + 1}, v{TT + 3}"]
            it += ln_scalars(TT, TT + 4, V_ST + 2 * i + 1, V_ST + 2 * i, V_XF + 4 * i, S_MASK, L)
            it += [f"v_mul_f32 v{V_ST + 2 * i}, {f32bits(-LOG2E):#x}, v{V_ST + 2 * i}"]
        spread(gs[n] + 6, NG_, it, per=3)
    elif kind == "out":
        t0 = NST - 2
        it = srd_lines(S_R, S_P2, 0, S * D * 2) + srd_lines(S_O, S_WS, WS_CSP, 16 * 2 * F * 4) + [
            f"v_and_b32 v{TT}, 31, v{L}", f"v_lshlrev_b32 v{TT}, 11, v{TT}", f"v_lshrrev_b32 v{TT + 1}, 5, v{L}",
            f"v_lshl_add_u32 v{TT}, v{TT + 1}, 4, v{TT}",
            f"s_lshl_b32 s{S_TMP + 2}, s{S_MT}, 16", f"s_lshl_b32 s{S_TMP + 3}, s{S_CB}, 7", f"s_add_u32 s{S_TMP + 2}, s{S_TMP + 2}, s{S_TMP + 3}",
            f"v_lshrrev_b32 v{TT + 1}, 3, v{L}", f"v_mul_u32_u24 v{TT + 1}, {2 * F * 4}, v{TT + 1}", f"v_and_b32 v{TT + 2}, 7, v{L}",
            f"v_lshl_add_u32 v{TT + 1}, v{TT + 2}, 2, v{TT + 1}",
            f"s_mul_i32 s{S_TMP + 3}, s2, 112", f"s_mul_i32 s{S_TMP + 4}, s{S_WAVE}, 28", f"s_add_u32 s{S_TMP + 3}, s{S_TMP + 3}, s{S_TMP + 4}",
            f"s_add_u32 s{S_TMP + 4}, s{S_TMP + 3}, {8 * 2 * F * 4}"]
        spread((t0 - 2) * NM, t0 * NM, it, per=1)
        it = [VM(("X", b), f"buffer_load_dwordx4 v[{V_X + 4 * b}:{V_X + 4 * b + 3}], v{TT}, s[{S_R}:{S_R + 3}], s{S_TMP + 2} offen offset:{b * 32}") for b in range(4)]
        it += [VM(("CSL", 0), f"buffer_load_dword v{V_CS}, v{TT + 1}, s[{S_O}:{S_O + 3}], s{S_TMP + 3} offen"),
               VM(("CSL", 1), f"buffer_load_dword v{V_CS + 1}, v{TT + 1}, s[{S_O}:{S_O + 3}], s{S_TMP + 4} offen")]
        spread(t0 * NM, NG_, it, per=1)
    elif kind == "down":
        t0 = NST - 2
        it = srd_lines(S_R, S_WS, WS_H, S * D * 2) + [
            f"s_lshl_b32 s{S_TMP + 2}, s{S_MT}, 16", f"s_lshl_b32 s{S_TMP + 3}, s{S_CB}, 12", f"s_add_u32 s{S_TMP + 2}, s{S_TMP + 2}, s{S_TMP + 3}"]
        spread((t0 - 1) * NM, t0 * NM, it, per=1)
        it = [VM(("X", b), f"buffer_load_dwordx4 v[{V_X + 4 * b}:{V_X + 4 * b + 3}], v{V_AO}, s[{S_R}:{S_R + 3}], s{S_TMP + 2} offen offset:{b * 1024}") for b in range(4)]
        spread(t0 * NM, NG_, it, per=1)

    if not alds:
        k.stamp(2)
    out([NEEDV(("W", 0, i)) for i in range(NDMA)] + [Item("bar")])
    if not alds:
        k.stamp(3)
    out(first_reads)
    k.stamp(4)

    def cap(G):
        if PER == 2:
            return 2
        if MT == 1:
            return 1
        return 1 if G % 2 == 0 else 0

    groups = []
    for grp in range(NST // UN):
        lines = []
        for G in range(grp * UN * NM, (grp + 1) * UN * NM):
            lines += sim.emit(pre[G])
            lines.append(mfma[G])
            items = list(post[G])
            n = 0
            while queue and queue[0][0] <= G:
                if queue[0][0] < G and n >= cap(G):
                    break
                items.append(make_vm(queue.pop(0)[2]))
                n += 1
            lines += sim.emit(items)
        groups.append(lines)
    assert not queue
    fold(k, groups, S_CNT)
    k.stamp(5)

    if kind == "qkv":
        out([NEEDD(("AUG", 5)), NEEDD(("RSR", 3))])
        for j in range(NT):
            a, w = vr(V_XF, 4), vr(V_AUG + 4 * j, 4)
            x, y = (a, w) if j >= 4 else (w, a)
            k(f"{M32} {vr(acc(j, 0), 16)}, {x}, {y}, {vr(acc(j, 0), 16)}")
        srd(k, S_O, S_WS, WS_Q, 12 * MB)
        k(f"s_lshl_b32 s{S_TMP + 5}, s{S_CB}, 18")
        k(f"s_lshl_b32 s{S_TMP + 4}, s{S_MT}, 11")
        k(f"s_add_u32 s{S_TMP + 5}, s{S_TMP + 5}, s{S_TMP + 4}")
        k.stamp(6)
        k("s_nop 3")
        for j in range(NT):
            t, h64 = j // 2, j % 2
            k(f"s_add_u32 s{S_TMP + 3}, s{S_TMP + 5}, {t * 4 * MB + h64 * 131072}")
            a0 = acc(j, 0)
            for r in range(0, 16, 2):
                aa = f"v[{a0 + r}:{a0 + r + 1}]"
                if t == 0:
                    k(f"v_pk_mul_f32 {aa}, {aa}, v[{V_ST + 2}:{V_ST + 3}] op_sel_hi:[1,0]")
                elif t == 1:
                    k(f"v_pk_mul_f32 {aa}, {aa}, v[{V_ST}:{V_ST + 1}] op_sel_hi:[1,0]")
                else:
                    k(f"v_pk_mul_f32 {aa}, {aa}, v[{V_RSR + r}:{V_RSR + r + 1}]")
            for blk in range(2):
                pb = a0 + blk * 8
                for q in range(4):
                    k(f"v_cvt_pk_bf16_f32 v{pb + q}, v{a0 + blk * 8 + 2 * q}, v{a0 + blk * 8 + 2 * q + 1}")
                k(f"buffer_store_dwordx4 v[{pb}:{pb + 3}], v{V_AO}, s[{S_O}:{S_O + 3}], s{S_TMP + 3} offen offset:{blk * 1024}{SC}")
    elif kind == "out":
        srd(k, S_O, S_WS, WS_H, S * D * 2)
        k(f"s_lshl_b32 s{S_TMP + 3}, s{S_MT}, 16")
        k(f"s_lshl_b32 s{S_TMP + 4}, s{S_CB}, 12")
        k(f"s_add_u32 s{S_TMP + 3}, s{S_TMP + 3}, s{S_TMP + 4}")
        k(f"v_mov_b32 v{V_ST}, 0")
        k(f"v_mov_b32 v{V_ST + 1}, 0")
        out([NEEDV(("X", 3)), NEEDV(("CSL", 1))])
        k.stamp(6)
        for b in range(4):
            k(f"v_permlane32_swap_b32 v{V_X + 4 * b}, v{V_X + 4 * b + 2}")
            k(f"v_permlane32_swap_b32 v{V_X + 4 * b + 1}, v{V_X + 4 * b + 3}")
    if kind in ("out", "down"):
        if kind == "down":
            srd(k, S_O, S_P2, 0, S * D * 2)
            k(f"v_and_b32 v{TT + 4}, 31, v{L}")
            k(f"v_lshlrev_b32 v{TT + 4}, 11, v{TT + 4}")
            k(f"v_lshrrev_b32 v{TT + 1}, 5, v{L}")
            k(f"v_lshl_add_u32 v{TT + 4}, v{TT + 1}, 4, v{TT + 4}")
            k(f"s_lshl_b32 s{S_TMP + 3}, s{S_MT}, 16")
            k(f"s_lshl_b32 s{S_TMP + 4}, s{S_CB}, 7")
            k(f"s_add_u32 s{S_TMP + 3}, s{S_TMP + 3}, s{S_TMP + 4}")
            out([NEEDV(("X", 3))])
            k.stamp(6)
            k("s_nop 3")
        for j in range(NT):
            a0 = acc(j, 0)
            for blk in range(2):
                pb = V_P + (j * 2 + blk) * 4
                for q in range(4):
                    r0, r1 = a0 + blk * 8 + 2 * q, a0 + blk * 8 + 2 * q + 1
                    xs_ = V_X + (j * 2 + blk) * 4 + q
                    k(f"v_cvt_pk_bf16_f32 v{TT}, v{r0}, v{r1}")
                    k(f"v_lshlrev_b32 v{r0}, 16, v{TT}")
                    k(f"v_and_b32 v{r1}, s{S_MASK}, v{TT}")
                    k(f"v_lshlrev_b32 v{TT + 2}, 16, v{xs_}")
                    k(f"v_and_b32 v{TT + 3}, s{S_MASK}, v{xs_}")
                    k(f"v_pk_add_f32 v[{r0}:{r1}], v[{r0}:{r1}], v[{TT + 2}:{TT + 3}]")
                    k(f"v_cvt_pk_bf16_f32 v{pb + q}, v{r0}, v{r1}")
                if kind == "out":
                    k(f"buffer_store_dwordx4 v[{pb}:{pb + 3}], v{V_AO}, s[{S_O}:{S_O + 3}], s{S_TMP + 3} offen offset:{(j * 2 + blk) * 1024}{SC}")
                else:
                    k("s_nop 1")
                    k(f"v_permlane32_swap_b32 v{pb}, v{pb + 2}")
                    k(f"v_permlane32_swap_b32 v{pb + 1}, v{pb + 3}")
                    k(f"buffer_store_dwordx4 v[{pb}:{pb + 3}], v{TT + 4}, s[{S_O}:{S_O + 3}], s{S_TMP + 3} offen offset:{j * 64 + blk * 32}")
    if kind == "out":
        for q in range(NT * 8):
            k(f"v_lshlrev_b32 v{TT}, 16, v{V_P + q}")
            k(f"v_and_b32 v{TT + 1}, s{S_MASK}, v{V_P + q}")
            k(f"v_add_f32 v{V_ST}, v{V_ST}, v{TT}")
            k(f"v_fmac_f32 v{V_ST + 1}, v{TT}, v{TT}")
            k(f"v_add_f32 v{V_ST}, v{V_ST}, v{TT + 1}")
            k(f"v_fmac_f32 v{V_ST + 1}, v{TT + 1}, v{TT + 1}")
        k(f"v_mov_b32 v{TT}, v{V_ST}")
        k(f"v_mov_b32 v{TT + 1}, v{V_ST + 1}")
        srd(k, S_R, S_WS, WS_ST2, 64 * 4096)
        k(f"v_permlane32_swap_b32 v{V_ST}, v{TT}")
        k(f"v_permlane32_swap_b32 v{V_ST + 1}, v{TT + 1}")
        k(f"s_lshl_b32 s{S_TMP + 3}, s{S_MT}, 12")
        k(f"s_lshl_b32 s{S_TMP + 4}, s{S_CB}, 8")
        k(f"s_add_u32 s{S_TMP + 3}, s{S_TMP + 3}, s{S_TMP + 4}")
        k(f"v_add_f32 v{TT + 2}, v{V_ST}, v{TT}")
        k(f"v_add_f32 v{TT + 3}, v{V_ST + 1}, v{TT + 1}")
        k(f"v_and_b32 v{TT + 4}, 31, v{L}")
        k(f"v_lshlrev_b32 v{TT + 4}, 3, v{TT + 4}")
        k(f"buffer_store_dwordx2 v[{TT + 2}:{TT + 3}], v{TT + 4}, s[{S_R}:{S_R + 3}], s{S_TMP + 3} offen{SC}")
        C = V_CS
        k(f"v_add_f32 v{C}, v{C}, v{C + 1}")
        k("s_nop 1")
        k(f"v_add_f32_dpp v{C}, v{C}, v{C} row_ror:8 row_mask:0xf bank_mask:0xf")
        k(f"s_and_b32 s{S_TMP + 2}, s2, 3")
        k(f"v_mov_b32 v{C + 1}, v{C}")
        k(f"s_mul_i32 s{S_TMP + 2}, s{S_TMP + 2}, 28")
        k(f"s_mul_i32 s{S_TMP + 3}, s{S_WAVE}, 7")
        k(f"v_permlane16_swap_b32 v{C}, v{C + 1}")
        k(f"s_add_u32 s{S_TMP + 2}, s{S_TMP + 2}, s{S_TMP + 3}")
        k("s_nop 0")
        k(f"v_add_f32 v{C}, v{C}, v{C + 1}")
        k(f"v_mov_b32 v{C + 1}, v{C}")
        k("s_nop 1")
        k(f"v_permlane32_swap_b32 v{C}, v{C + 1}")
        k("s_nop 1")
        k(f"v_add_f32 v{C}, v{C}, v{C + 1}")
        for l in cs_split(C, C + 1, C + 4, S_MASK):
            k(l)
        srd(k, S_O, S_WS, WS_AUG, 32 * 3584)
        k(f"v_add_u32 v{TT}, s{S_TMP + 2}, v{L}")
        k(f"v_lshrrev_b32 v{TT + 1}, 4, v{TT}")
        k(f"v_lshlrev_b32 v{TT + 1}, 9, v{TT + 1}")
        k(f"v_and_b32 v{TT}, 15, v{TT}")
        k(f"v_lshl_add_u32 v{TT}, v{TT}, 4, v{TT + 1}")
        k(f"s_bfe_u32 s{S_TMP + 2}, s2, {2 | (5 << 16)}")
        k(f"s_mul_i32 s{S_TMP + 2}, s{S_TMP + 2}, 3584")
        k(f"s_lshr_b32 s{S_TMP + 3}, s2, 7")
        k(f"s_lshl_b32 s{S_TMP + 3}, s{S_TMP + 3}, 8")
        k(f"s_add_u32 s{S_TMP + 2}, s{S_TMP + 2}, s{S_TMP + 3}")
        k("s_mov_b64 exec, 0x7f")
        k(f"buffer_store_dwordx4 v[{C + 4}:{C + 7}], v{TT}, s[{S_O}:{S_O + 3}], s{S_TMP + 2} offen{SC}")
        k("s_mov_b64 exec, -1")
    elif kind == "gu":
        out([NEEDV(("AUG", NT - 1))])
        k("s_nop 1")
        for i in range(MT):
            for j in range(NT):
                k(f"{M32} {vr(acc(j, i), 16)}, a[{A_AUG + 4 * j}:{A_AUG + 4 * j + 3}], {vr(V_XF + 4 * i, 4)}, {vr(acc(j, i), 16)}")
        srd(k, S_O, S_WS, WS_ACT, S * F * 2)
        k.stamp(6)
        for i in range(MT):
            k(f"s_add_u32 s{S_TMP + 3}, s{S_MT}, {i}")
            k(f"s_mul_i32 s{S_TMP + 3}, s{S_TMP + 3}, {F // 16}")
            k(f"s_mul_i32 s{S_TMP + 4}, s{S_CB}, 7")
            k(f"s_add_u32 s{S_TMP + 3}, s{S_TMP + 3}, s{S_TMP + 4}")
            k(f"s_lshl_b32 s{S_TMP + 3}, s{S_TMP + 3}, 10")
            st = f"v[{V_ST + 2 * i}:{V_ST + 2 * i + 1}]"
            for j in range(NT):
                a0 = acc(j, i)
                for r in range(0, 8, 2):
                    k(f"v_pk_mul_f32 v[{a0 + r}:{a0 + r + 1}], v[{a0 + r}:{a0 + r + 1}], {st} op_sel_hi:[1,0]")
                for r in range(8):
                    k(f"v_exp_f32 v{a0 + r}, v{a0 + r}")
                for r in range(0, 8, 2):
                    k(f"v_pk_fma_f32 v[{a0 + r}:{a0 + r + 1}], v[{a0 + r}:{a0 + r + 1}], {st}, {st} op_sel:[0,1,1] op_sel_hi:[1,1,1]")
                for r in range(8):
                    k(f"v_rcp_f32 v{a0 + r}, v{a0 + r}")
                for r in range(0, 8, 2):
                    k(f"v_pk_mul_f32 v[{a0 + 8 + r}:{a0 + 9 + r}], v[{a0 + r}:{a0 + r + 1}], v[{a0 + 8 + r}:{a0 + 9 + r}]")
                for q in range(4):
                    k(f"v_cvt_pk_bf16_f32 v{a0 + q}, v{a0 + 8 + 2 * q}, v{a0 + 9 + 2 * q}")
                off = j * 1024
                k(f"buffer_store_dwordx4 v[{a0}:{a0 + 3}], v{V_AO + (off >> 12)}, s[{S_O}:{S_O + 3}], s{S_TMP + 3} offen offset:{off & 4095}{SC}")
    k.stamp(7)
    k.label("done")
    k("s_endpgm")
    for l in tail_code:
        k(l)
    return k
```

```python
import sys
from gen_common import *
from gen_gemm import gen_gemm
from gen_attn import gen_attn
ks = [
    gen_gemm(cfg(name="qkv_kernel", kind="qkv", MT=1, NT=6, BK=64, K=D, DW=1, RA=2, a_off=WS_XN, kperm=False)),
    gen_attn("attn_kernel"),
    gen_gemm(cfg(name="outp_kernel", kind="out", MT=1, NT=2, BK=128, K=D, DW=4, RA=2, a_off=WS_O, kperm=True)),
    gen_gemm(cfg(name="gu_kernel", kind="gu", MT=2, NT=7, BK=64, K=D, DW=1, RA=2, a_off=WS_H, kperm=True)),
    gen_gemm(cfg(name="down_kernel", kind="down", MT=1, NT=2, BK=128, K=F, DW=4, RA=2, a_off=WS_ACT, kperm=True)),
]
build(ks, sys.argv[1] if len(sys.argv) > 1 else "sequential_preLN__mha_block__glu_gated_glu__prompt.s")
```

```python
from gen_common import *

M32 = "v_mfma_f32_32x32x16_bf16"
M16 = "v_mfma_f32_16x16x32_bf16"


def gen_attn(name, nk=None, nk_end=None):
    RL = 4
    SLOT = 16384
    k = K(name, 256, 512, RL * SLOT, 140)
    S0, S1, O, NEGM, P, LL, Q, KF, VF, SEL, PFB, CSA, SEL2 = 16, 32, 48, 64, 80, 88, 92, 100, 108, 116, 120, 128, 132
    SB = [S0, S1]
    V_LANE, V_DO, V_RB, V_CUR, V_NXT, V_PF, T = 1, 2, 3, 4, 5, 6, 8
    S_WS, S_KS, S_VS, S_QS, S_OS = 4, 8, 12, 16, 20
    S_WAVE, S_HEAD, S_QT, S_OFF, S_WSLOT, S_RSLOT, S_CNT, S_WB, S_T = 24, 25, 26, 27, 28, 29, 30, 31, 32
    S_PF, S_PFO, S_PFS, S_CSO, S_XCD, S_IDX = 40, 44, 45, 46, 47, 48
    S_WG, S_WU, S_WD, S_WO = 52, 54, 56, 58
    S_RP, S_RPO = 16, 49
    k(f"""
    s_load_dwordx2 s[{S_WS}:{S_WS + 1}], s[0:1], {KA_WS}
    s_load_dwordx4 s[{S_WG}:{S_WG + 3}], s[0:1], {KA_WG}
    s_load_dwordx2 s[{S_WD}:{S_WD + 1}], s[0:1], {KA_WD}
    s_load_dwordx2 s[{S_WO}:{S_WO + 1}], s[0:1], {KA_WO}
    s_cmp_ge_u32 s2, 256
    s_cbranch_scc1 {k.L('done')}
    v_lshrrev_b32 v{T}, 6, v0
    v_and_b32 v{V_LANE}, 63, v0
    v_readfirstlane_b32 s{S_WAVE}, v{T}
    s_and_b32 s{S_XCD}, s2, 7
    s_lshr_b32 s{S_IDX}, s2, 3
    s_lshl_b32 s{S_HEAD}, s{S_XCD}, 2
    s_lshr_b32 s{S_T + 2}, s{S_IDX}, 3
    s_add_u32 s{S_HEAD}, s{S_HEAD}, s{S_T + 2}
    s_and_b32 s{S_QT}, s{S_IDX}, 7
    s_lshl_b32 s{S_QT}, s{S_QT}, 3
    s_add_u32 s{S_QT}, s{S_QT}, s{S_WAVE}             ; q tile
    v_lshlrev_b32 v{V_RB}, 4, v{V_LANE}               ; lane*16
    v_lshlrev_b32 v{V_DO}, 4, v0
    s_lshl_b32 s{S_WB}, s{S_WAVE}, 10
    s_lshl_b32 s{S_T + 3}, s{S_HEAD}, 17
    s_lshr_b32 s{S_T + 4}, s{S_XCD}, 2
    s_lshl_b32 s{S_T + 4}, s{S_T + 4}, 5
    s_add_u32 s{S_T + 4}, s{S_T + 4}, s{S_IDX}
    s_mul_i32 s{S_T + 4}, s{S_T + 4}, 7
    s_add_u32 s{S_T + 4}, s{S_T + 4}, s{S_WAVE}        ; task
    s_lshr_b32 s{S_T + 5}, s{S_T + 4}, 4               ; panel28
    s_and_b32 s{S_T + 4}, s{S_T + 4}, 15               ; slice
    s_cmp_ge_u32 s{S_T + 5}, 14
    s_cselect_b32 s{S_T + 6}, 14, 0
    s_cselect_b32 s{S_T + 7}, {F}, 0                   ; mat*F
    s_sub_u32 s{S_T + 5}, s{S_T + 5}, s{S_T + 6}       ; p14
    s_lshl_b32 s{S_T + 5}, s{S_T + 5}, 6
    s_and_b32 s{S_T + 6}, s{S_XCD}, 3
    s_mul_i32 s{S_T + 6}, s{S_T + 6}, 896
    s_add_u32 s{S_T + 5}, s{S_T + 5}, s{S_T + 6}
    s_mul_i32 s{S_PFO}, s{S_T + 4}, {64 * F * 2}
    s_lshl_b32 s{S_T + 6}, s{S_T + 5}, 1
    s_add_u32 s{S_PFO}, s{S_PFO}, s{S_T + 6}
    s_mov_b32 s{S_PFS}, {8 * F * 2}
    s_mul_i32 s{S_CSO}, s{S_T + 4}, {2 * F * 4}
    s_add_u32 s{S_T + 5}, s{S_T + 5}, s{S_T + 7}
    s_lshl_b32 s{S_T + 5}, s{S_T + 5}, 2
    s_add_u32 s{S_CSO}, s{S_CSO}, s{S_T + 5}
    v_lshrrev_b32 v{T}, 3, v{V_LANE}
    v_mul_u32_u24 v{T}, {F * 2}, v{T}
    v_and_b32 v{T + 1}, 7, v{V_LANE}
    v_lshl_add_u32 v{V_PF}, v{T + 1}, 4, v{T}
    s_waitcnt lgkmcnt(0)
    """)
    k.stamp(0)
    srd(k, S_KS, S_WS, WS_K, 131072, off_sgpr=S_T + 3)
    srd(k, S_QS, S_WS, WS_Q, 131072, off_sgpr=S_T + 3)
    srd(k, S_VS, S_WS, WS_V, 131072, off_sgpr=S_T + 3)
    k(f"s_cmp_lg_u32 s{S_T + 7}, 0")
    k(f"s_cselect_b32 s{S_PF}, s{S_WU}, s{S_WG}")
    k(f"s_cselect_b32 s{S_PF + 1}, s{S_WU + 1}, s{S_WG + 1}")
    k(f"s_cmp_eq_u32 s{S_WAVE}, 7")
    k(f"s_cselect_b32 s{S_PF + 2}, 0, {D * F * 2}")
    k(f"s_mov_b32 s{S_PF + 3}, 0x20000")
    k(f"s_lshl_b32 s{S_T + 4}, s{S_QT}, 11")

    def pf(buf):
        k(f"buffer_load_dwordx4 v[{PFB + 4 * buf}:{PFB + 4 * buf + 3}], v{V_PF}, s[{S_PF}:{S_PF + 3}], s{S_PFO} offen")
        k(f"s_add_u32 s{S_PFO}, s{S_PFO}, s{S_PFS}")

    def kv(s, which):
        k(f"s_add_u32 m0, s{S_WB}, {s * SLOT + which * 8192}")
        k(f"s_mov_b32 s{S_OFF}, {s * 8192}")
        sr = S_VS if which else S_KS
        k(f"buffer_load_dwordx4 v{V_DO}, s[{sr}:{sr + 3}], s{S_OFF} offen lds")

    kv(0, 0)
    k(f"buffer_load_dwordx4 v[{Q}:{Q + 3}], v{V_RB}, s[{S_QS}:{S_QS + 3}], s{S_T + 4} offen")
    k(f"buffer_load_dwordx4 v[{Q + 4}:{Q + 7}], v{V_RB}, s[{S_QS}:{S_QS + 3}], s{S_T + 4} offen offset:1024")
    kv(0, 1)
    k(f"s_lshl_b32 s{S_T + 5}, s2, 3")
    k(f"s_add_u32 s{S_T + 5}, s{S_T + 5}, s{S_WAVE}")
    k(f"s_and_b32 s{S_T + 6}, s{S_T + 5}, 15")
    k(f"s_mul_i32 s{S_T + 6}, s{S_T + 6}, {F * 128}")
    srd(k, S_RP, S_WS, WS_WD2, F * 128, off_sgpr=S_T + 6)
    k(f"s_lshr_b32 s{S_RPO}, s{S_T + 5}, 4")
    k(f"s_lshl_b32 s{S_RPO}, s{S_RPO}, 10")
    k.stamp(1)
    k(f"""
    v_lshrrev_b32 v{T}, 4, v{V_LANE}
    v_lshrrev_b32 v{T + 1}, 2, v{V_LANE}
    v_xor_b32 v{T}, v{T}, v{T + 1}
    v_and_b32 v{T}, 1, v{T}
    v_mov_b32 v{T + 1}, 0x3f803f80
    v_cmp_eq_u32 vcc, 0, v{T}
    v_and_b32 v{T + 2}, 15, v{V_LANE}
    v_lshrrev_b32 v{T + 3}, 1, v{T + 2}
    v_cndmask_b32 v{SEL}, 0, v{T + 1}, vcc
    v_mov_b32 v{SEL + 1}, v{SEL}
    v_mov_b32 v{SEL + 2}, v{SEL}
    v_mov_b32 v{SEL + 3}, v{SEL}
    v_and_b32 v{T + 2}, 1, v{T + 2}
    v_lshlrev_b32 v{T + 2}, 4, v{T + 2}
    v_mov_b32 v{T + 4}, 0x3f80
    v_lshlrev_b32 v{T + 2}, v{T + 2}, v{T + 4}
    """)
    for d in range(4):
        k(f"v_cmp_eq_u32 vcc, {d}, v{T + 3}")
        k(f"v_mov_b32 v{CSA + d}, 0")
        k(f"v_mov_b32 v{LL + d}, 0")
        k(f"v_cndmask_b32 v{SEL2 + d}, 0, v{T + 2}, vcc")
    for r in range(16):
        k(f"v_mov_b32 v{O + r}, 0")
    for r in range(8):
        k(f"v_mov_b32 v{P + r}, 0")
        k(f"v_mov_b32 v{PFB + r}, 0")
    k(f"s_mov_b32 s{S_WSLOT}, {(RL - 1) * SLOT}")
    k(f"s_mov_b32 s{S_RSLOT}, 0")
    k(f"s_mov_b32 s{S_CNT}, 0")
    k(f"s_mov_b32 s{S_RPO + 1}, 0")
    k(f"v_mov_b32 v{V_CUR}, v{V_RB}")
    k.stamp(2)
    k(f"s_waitcnt vmcnt(0)")
    k.stamp(3)
    k("s_barrier")
    k(f"ds_read_b128 v[{KF}:{KF + 3}], v{V_CUR}")
    k(f"ds_read_b128 v[{KF + 4}:{KF + 7}], v{V_CUR} offset:1024")
    kv(1, 0)
    k("s_waitcnt lgkmcnt(0)")
    k(f"{M32} {vr(S0, 16)}, {vr(KF, 4)}, {vr(Q, 4)}, 0")
    k(f"{M32} {vr(S0, 16)}, {vr(KF + 4, 4)}, {vr(Q + 4, 4)}, {vr(S0, 16)}")
    kv(1, 1)
    kv(2, 0)
    kv(2, 1)
    k(f"s_mov_b32 s{S_OFF}, {(RL - 1) * 8192}")
    k("s_nop 3")
    k(f"v_max3_f32 v{T}, v{S0}, v{S0 + 1}, v{S0 + 2}")
    for r in range(3, 15, 2):
        k(f"v_max3_f32 v{T}, v{T}, v{S0 + r}, v{S0 + r + 1}")
    k(f"v_max_f32 v{T}, v{T}, v{S0 + 15}")
    k(f"v_mov_b32 v{T + 1}, v{T}")
    k("s_nop 1")
    k(f"v_permlane32_swap_b32 v{T}, v{T + 1}")
    k("s_nop 1")
    k(f"v_max_f32 v{T}, v{T}, v{T + 1}")
    for r in range(16):
        k(f"v_sub_f32 v{NEGM + r}, 0, v{T}")
    k("s_nop 1")
    k(f"{M32} {vr(S0, 16)}, {vr(KF, 4)}, {vr(Q, 4)}, {vr(NEGM, 16)}")
    k(f"{M32} {vr(S0, 16)}, {vr(KF + 4, 4)}, {vr(Q + 4, 4)}, {vr(S0, 16)}")
    k(f"ds_read_b128 v[{KF}:{KF + 3}], v{V_CUR} offset:2048")
    k(f"ds_read_b128 v[{VF + 4}:{VF + 7}], v{V_CUR} offset:{8192 + 1024}")
    k(f"ds_read_b128 v[{KF + 4}:{KF + 7}], v{V_CUR} offset:{2048 + 1024}")
    k(f"ds_read_b128 v[{VF}:{VF + 3}], v{V_CUR} offset:8192")
    k("s_nop 7")
    k("s_nop 3")

    def ex(b, r0, n):
        for r in range(r0, r0 + n):
            k(f"v_exp_f32 v{b + r}, v{b + r}")

    def cv(b, q0, n):
        for q in range(q0, q0 + n):
            k(f"v_cvt_pk_bf16_f32 v{P + q}, v{b + 2 * q}, v{b + 2 * q + 1}")

    k.stamp(4)
    k.label("loop")
    for st in range(2):
        cur, nxt = (V_CUR, V_NXT) if st == 0 else (V_NXT, V_CUR)
        for tt in range(4):
            cb, nb = SB[tt % 2], SB[(tt + 1) % 2]
            if tt == 2:
                k(f"s_waitcnt vmcnt(3)")
                k("s_barrier")

            def kaddr(dt, half):
                t2 = tt + dt
                return (cur, t2 * 2048 + half * 1024) if t2 < 4 else (nxt, (t2 - 4) * 2048 + half * 1024)

            k(f"s_setprio {3 - (tt + 2) % 4}  ; PRIO")
            k("s_waitcnt lgkmcnt(2)")
            k(f"{M32} {vr(nb, 16)}, {vr(KF, 4)}, {vr(Q, 4)}, {vr(NEGM, 16)}")
            a, o = kaddr(2, 0)
            k(f"ds_read_b128 v[{KF}:{KF + 3}], v{a} offset:{o}")
            ex(cb, 0, 4)
            k(f"{M32} {vr(O, 16)}, {vr(VF + 4, 4)}, {vr(P + 4, 4)}, {vr(O, 16)}")
            a, o = kaddr(0, 1)
            k(f"ds_read_b128 v[{VF + 4}:{VF + 7}], v{a} offset:{o + 8192}")
            if tt == 2:
                k(f"buffer_load_dwordx4 v{V_DO}, s[{S_KS}:{S_KS + 3}], s{S_OFF} offen lds")
            if tt == 3:
                k(f"buffer_load_dwordx4 v{V_DO}, s[{S_VS}:{S_VS + 3}], s{S_OFF} offen lds")
            ex(cb, 4, 3)
            cv(cb, 0, 2)
            k(f"{M16} {vr(LL, 4)}, {vr(SEL, 4)}, {vr(P + 4, 4)}, {vr(LL, 4)}")
            ex(cb, 7, 2)
            k("s_waitcnt lgkmcnt(2)")
            k(f"{M32} {vr(nb, 16)}, {vr(KF + 4, 4)}, {vr(Q + 4, 4)}, {vr(nb, 16)}")
            a, o = kaddr(2, 1)
            k(f"ds_read_b128 v[{KF + 4}:{KF + 7}], v{a} offset:{o}")
            cv(cb, 2, 2)
            if tt == 1:
                k(f"s_add_u32 s{S_RSLOT}, s{S_RSLOT}, {SLOT}")
                k(f"s_and_b32 s{S_RSLOT}, s{S_RSLOT}, {RL * SLOT - 1}")
                k(f"v_add_u32 v{nxt}, s{S_RSLOT}, v{V_RB}")
                k(f"s_add_u32 m0, s{S_WSLOT}, s{S_WB}")
            if tt == 2:
                k(f"s_add_u32 m0, m0, 8192")
                k(f"s_add_u32 s{S_WSLOT}, s{S_WSLOT}, {SLOT}")
                k(f"s_and_b32 s{S_WSLOT}, s{S_WSLOT}, {RL * SLOT - 1}")
            if tt == 3:
                k(f"s_add_u32 s{S_OFF}, s{S_OFF}, 8192")
            ex(cb, 9, 3)
            k(f"{M32} {vr(O, 16)}, {vr(VF, 4)}, {vr(P, 4)}, {vr(O, 16)}")
            a, o = kaddr(1, 0)
            k(f"ds_read_b128 v[{VF}:{VF + 3}], v{a} offset:{o + 8192}")
            ex(cb, 12, 4)
            k(f"{M16} {vr(LL, 4)}, {vr(SEL, 4)}, {vr(P, 4)}, {vr(LL, 4)}")
            if tt == 3 and st == 1:
                k(f"s_add_u32 s{S_CNT}, s{S_CNT}, 1")
                k(f"s_cmp_lt_u32 s{S_CNT}, 4")
            cv(cb, 4, 2)
            if tt == 0:
                k(f"{M16} {vr(CSA, 4)}, {vr(SEL2, 4)}, {vr(PFB + 4 * st, 4)}, {vr(CSA, 4)}")
                k(f"s_cmp_eq_u32 s{S_RPO + 1}, 0")
                k(f"s_cbranch_scc1 {k.L(f'nost{st}')}")
                k(f"buffer_store_dwordx4 v[{PFB + 4 * st}:{PFB + 4 * st + 3}], v{V_RB}, s[{S_RP}:{S_RP + 3}], s{S_RPO} offen sc1")
                k(f"s_add_u32 s{S_RPO}, s{S_RPO}, s{S_RPO + 1}")
                k.label(f"nost{st}")
            if tt == 1:
                pf(st)
            cv(cb, 6, 2)
    k(f"s_cbranch_scc1 {k.L('loop')}")
    k(f"s_cmp_eq_u32 s{S_CNT}, 4")
    k(f"s_cbranch_scc1 {k.L('sw_down')}")
    k(f"s_cmp_eq_u32 s{S_CNT}, 5")
    k(f"s_cbranch_scc1 {k.L('sw_store')}")
    k(f"s_cmp_eq_u32 s{S_CNT}, 6")
    k(f"s_cbranch_scc1 {k.L('sw_wo')}")
    k(f"s_mov_b32 s{S_RPO + 1}, 0")
    k(f"s_cmp_eq_u32 s{S_CNT}, 7")
    k(f"s_cbranch_scc1 {k.L('loop')}")
    k(f"s_branch {k.L('exit')}")
    k.label("sw_down")
    k(f"s_mov_b32 s{S_PF}, s{S_WD}")
    k(f"s_mov_b32 s{S_PF + 1}, s{S_WD + 1}")
    k(f"s_mov_b32 s{S_PF + 2}, {F * D * 2}")
    k(f"s_lshl_b32 s{S_T}, s2, 3")
    k(f"s_add_u32 s{S_T}, s{S_T}, s{S_WAVE}")
    k(f"s_lshr_b32 s{S_PFO}, s{S_T}, 4")
    k(f"s_lshl_b32 s{S_PFO}, s{S_PFO}, 14")
    k(f"s_and_b32 s{S_T}, s{S_T}, 15")
    k(f"s_lshl_b32 s{S_T}, s{S_T}, 7")
    k(f"s_add_u32 s{S_PFO}, s{S_PFO}, s{S_T}")
    k(f"s_mov_b32 s{S_PFS}, {128 * 16384}")
    k(f"v_lshrrev_b32 v{T}, 3, v{V_LANE}")
    k(f"v_and_b32 v{T + 1}, 7, v{V_LANE}")
    k(f"v_bfe_u32 v{T + 2}, v{V_LANE}, 4, 1")
    k(f"v_lshlrev_b32 v{T + 2}, 2, v{T + 2}")
    k(f"v_xor_b32 v{T + 1}, v{T + 1}, v{T + 2}")
    k(f"v_lshlrev_b32 v{T}, 11, v{T}")
    k(f"v_lshl_add_u32 v{V_PF}, v{T + 1}, 4, v{T}")
    k(f"s_branch {k.L('loop')}")
    k.label("sw_wo")
    k(f"s_mov_b32 s{S_PF}, s{S_WO}")
    k(f"s_mov_b32 s{S_PF + 1}, s{S_WO + 1}")
    k(f"s_mov_b32 s{S_PF + 2}, {D * D * 2}")
    k(f"s_lshl_b32 s{S_PFO}, s{S_IDX}, 3")
    k(f"s_add_u32 s{S_PFO}, s{S_PFO}, s{S_WAVE}")
    k(f"s_lshl_b32 s{S_PFO}, s{S_PFO}, 13")
    k(f"s_and_b32 s{S_T}, s{S_XCD}, 1")
    k(f"s_lshl_b32 s{S_T}, s{S_T}, 10")
    k(f"s_add_u32 s{S_PFO}, s{S_PFO}, s{S_T}")
    k(f"s_mov_b32 s{S_PFS}, 2048")
    k(f"v_mov_b32 v{V_PF}, v{V_RB}")
    if nk:
        for l in code_srd(92, nk, nk_end):
            k(l)
        k(f"v_lshlrev_b32 v{T}, 3, v{V_DO}")
        k(f"buffer_load_dword v136, v{T}, s[92:95], 0 offen")
    k(f"s_branch {k.L('loop')}")
    k.label("sw_store")
    k(f"s_mov_b32 s{S_RPO + 1}, 131072")
    k(f"s_cmp_eq_u32 s{S_WAVE}, 7")
    k(f"s_cbranch_scc1 {k.L('loop')}")
    srd(k, S_OS, S_WS, WS_CSP, 16 * 2 * F * 4)
    for d in range(4):
        k(f"v_add_f32_dpp v{T + 4 + d}, v{CSA + d}, v{CSA + d} row_ror:8 row_mask:0xf bank_mask:0xf")
    k(f"v_and_b32 v{T}, 7, v{V_LANE}")
    k(f"v_lshlrev_b32 v{T}, 5, v{T}")
    k(f"v_and_b32 v{T + 1}, 16, v{V_LANE}")
    k(f"v_add_u32 v{T}, v{T}, v{T + 1}")
    k("s_mov_b32 exec_hi, 0")
    k(f"buffer_store_dwordx4 v[{T + 4}:{T + 7}], v{T}, s[{S_OS}:{S_OS + 3}], s{S_CSO} offen sc1")
    k("s_mov_b64 exec, -1")
    k(f"s_branch {k.L('loop')}")
    k.label("exit")
    k.stamp(5)
    k.stamp(6)
    k("s_waitcnt lgkmcnt(0)")
    k("s_nop 1")
    k(f"{M32} {vr(O, 16)}, {vr(VF + 4, 4)}, {vr(P + 4, 4)}, {vr(O, 16)}")
    k(f"{M16} {vr(LL, 4)}, {vr(SEL, 4)}, {vr(P + 4, 4)}, {vr(LL, 4)}")
    srd(k, S_OS, S_WS, WS_O, S * D * 2)
    k(f"s_lshl_b32 s{S_T}, s{S_QT}, 16")
    k(f"s_lshl_b32 s{S_T + 1}, s{S_HEAD}, 11")
    k(f"s_add_u32 s{S_T}, s{S_T}, s{S_T + 1}")
    k("s_nop 7")
    k("s_nop 7")
    k(f"v_rcp_f32 v{T}, v{LL}")
    k("s_nop 0")
    for r in range(16):
        k(f"v_mul_f32 v{O + r}, v{O + r}, v{T}")
    for q in range(8):
        k(f"v_cvt_pk_bf16_f32 v{P + q}, v{O + 2 * q}, v{O + 2 * q + 1}")
    k(f"buffer_store_dwordx4 v[{P}:{P + 3}], v{V_RB}, s[{S_OS}:{S_OS + 3}], s{S_T} offen sc1")
    k(f"buffer_store_dwordx4 v[{P + 4}:{P + 7}], v{V_RB}, s[{S_OS}:{S_OS + 3}], s{S_T} offen offset:1024 sc1")
    k.stamp(7)
    k.label("done")
    k("s_endpgm")
    return k
```

```python
import sys, math

S, D, H, DH, F = 2048, 1024, 32, 32, 3584
MB = 1 << 20
WS_XN = 0
WS_Q = 4 * MB
WS_K = 8 * MB
WS_V = 12 * MB
WS_O = 16 * MB
WS_H = 20 * MB
WS_HN = 24 * MB
WS_ACT = 28 * MB
WS_CSP = 44 * MB
WS_AUG = 45 * MB
WS_ST2 = 46 * MB
WS_ST1 = 47 * MB
WS_CS1 = 48 * MB
WS_WD2 = 50 * MB
WS_FLG = 49 * MB
KA_X, KA_WQKV, KA_WO, KA_BX, KA_WG, KA_WU, KA_WD, KA_OUT, KA_DBG, KA_WS = [8 * i for i in range(10)]

LOG2E = 1.4426950408889634
import os
STAMP = bool(os.environ.get('STAMP'))
STAMP_IDX = {}


def f32bits(x):
    import struct
    return struct.unpack("<I", struct.pack("<f", x))[0]


class K:
    def __init__(self, name, grid, block, lds, nvgpr, nagpr=0, nsgpr=96):
        self.name, self.grid, self.block, self.lds = name, grid, block, lds
        self.nvgpr, self.nagpr, self.nsgpr = nvgpr, nagpr, nsgpr
        self.lines = []

    def __call__(self, s):
        for l in s.split("\n"):
            l = l.strip()
            if l:
                self.lines.append(l if l.endswith(":") else "    " + l)

    def label(self, l):
        self.lines.append(f"{self.name}_{l}:")

    def L(self, l):
        return f"{self.name}_{l}"

    def text(self):
        lines = list(self.lines)
        if STAMP:
            idx = self.idx
            pre = ["    s_memtime s[80:81]", "    s_memrealtime s[82:83]", "    s_load_dwordx2 s[88:89], s[0:1], 72", "    s_mov_b32 s90, s2",
                   "    v_lshrrev_b32 v1, 6, v0", "    s_nop 1", "    v_readfirstlane_b32 s91, v1", "    s_waitcnt lgkmcnt(0)"]
            post = ["    s_waitcnt vmcnt(0) lgkmcnt(0)", "    s_memtime s[84:85]", "    s_memrealtime s[86:87]", "    s_waitcnt lgkmcnt(0)",
                    "    s_lshl_b32 s90, s90, 3", "    s_add_u32 s90, s90, s91", "    s_lshl_b32 s90, s90, 6",
                    f"    s_add_u32 s90, s90, {64 * MB + idx * 262144}", "    s_add_u32 s88, s88, s90", "    s_addc_u32 s89, s89, 0",
                    "    v_mov_b32 v0, 0"]
            for i in range(8):
                post.append(f"    v_mov_b32 v1, s{80 + i}")
                post.append(f"    global_store_dword v0, v1, s[88:89] offset:{4 * i}")
            for i in range(8):
                post.append(f"    v_mov_b32 v1, s{60 + 2 * i}")
                post.append(f"    global_store_dword v0, v1, s[88:89] offset:{32 + 4 * i}")
            post.append("    s_waitcnt vmcnt(0)")
            j = lines.index(f"{self.name}_done:")
            lines = pre + lines[:j] + post + lines[j:]
        lines = [l for l in lines if STAMP or "STAMP" not in l]
        return (f".globl {self.name}\n.p2align 8\n.type {self.name},@function\n{self.name}:\n{self.name}_beg:\n"
                + "\n".join(lines) + f"\n{self.name}_end:\n")

    def stamp(self, i):
        self.lines.append(f"    s_memtime s[{60 + 2 * i}:{61 + 2 * i}]  ; STAMP")
        self.lines.append(f"    s_waitcnt lgkmcnt(0)  ; STAMP")

    def desc(self):
        acc = (self.nvgpr + 3) // 4 * 4
        nfv = acc + self.nagpr if self.nagpr else self.nvgpr
        return f""".p2align 6
.amdhsa_kernel {self.name}
  .amdhsa_next_free_vgpr {nfv}
  .amdhsa_next_free_sgpr {self.nsgpr}
  .amdhsa_accum_offset {acc}
  .amdhsa_group_segment_fixed_size 0
  .amdhsa_kernarg_size 80
  .amdhsa_user_sgpr_count 2
  .amdhsa_user_sgpr_kernarg_segment_ptr 1
  .amdhsa_system_sgpr_workgroup_id_x 1
.end_amdhsa_kernel
"""

    def launch(self):
        return f"; @launch kernel={self.name} grid=({self.grid},1,1) block=({self.block},1,1) lds={self.lds}"


_pcn = [0]


def code_srd(dst, start, end, back=False):
    _pcn[0] += 1
    l = f".Lpc{_pcn[0]}"
    if back:
        return [f"s_getpc_b64 s[{dst}:{dst + 1}]\n{l}:\ns_sub_u32 s{dst}, s{dst}, {l}-{start}\ns_subb_u32 s{dst + 1}, s{dst + 1}, 0",
                f"s_mov_b32 s{dst + 2}, {end}-{start}", f"s_mov_b32 s{dst + 3}, 0x20000"]
    return [f"s_getpc_b64 s[{dst}:{dst + 1}]\n{l}:\ns_add_u32 s{dst}, s{dst}, {start}-{l}\ns_addc_u32 s{dst + 1}, s{dst + 1}, 0",
            f"s_mov_b32 s{dst + 2}, {end}-{start}", f"s_mov_b32 s{dst + 3}, 0x20000"]


def vr(b, n=1, f="v"):
    return f"{f}{b}" if n == 1 else f"{f}[{b}:{b + n - 1}]"


def srd(k, dst, ptr, off, nbytes, off_sgpr=None):
    if off:
        k(f"s_add_u32 s{dst}, s{ptr}, {off}")
        k(f"s_addc_u32 s{dst + 1}, s{ptr + 1}, 0")
    else:
        k(f"s_mov_b32 s{dst}, s{ptr}")
        k(f"s_mov_b32 s{dst + 1}, s{ptr + 1}")
    if off_sgpr is not None:
        k(f"s_add_u32 s{dst}, s{dst}, s{off_sgpr}")
        k(f"s_addc_u32 s{dst + 1}, s{dst + 1}, 0")
    k(f"s_mov_b32 s{dst + 2}, {nbytes}")
    k(f"s_mov_b32 s{dst + 3}, 0x20000")


def gen_ln(name, first):
    k = K(name, 256, 256, 256, 80)
    k(f"""
    s_load_dwordx2 s[4:5], s[0:1], {KA_X}
    s_load_dwordx2 s[6:7], s[0:1], {KA_WS}
    s_cmp_ge_u32 s2, 256
    s_cbranch_scc1 {k.L('done')}
    v_and_b32 v1, 7, v0               ; r8
    v_lshrrev_b32 v2, 6, v0           ; wave
    v_bfe_u32 v3, v0, 3, 3            ; lane>>3
    v_lshl_add_u32 v3, v2, 5, v3
    s_lshr_b32 s8, s2, 2              ; mt
    s_lshl_b32 s8, s8, 16
    s_and_b32 s9, s2, 3
    s_lshl_b32 s9, s9, 7              ; (b&3)*8*16
    s_add_u32 s8, s8, s9
    v_lshrrev_b32 v4, 1, v3
    v_lshlrev_b32 v4, 10, v4
    v_and_b32 v5, 1, v3
    v_lshl_add_u32 v4, v5, 9, v4
    v_lshl_add_u32 v4, v1, 4, v4
    v_add_u32 v4, s8, v4
    s_mov_b32 s20, 4096
    s_mov_b32 s21, 8192
    s_mov_b32 s22, 12288
    s_waitcnt lgkmcnt(0)
    """)
    if first:
        srd(k, 12, 4, 0, S * D * 2)
        srd(k, 16, 6, WS_XN, S * D * 2)
        k(f"""
        s_lshl_b32 s10, s2, 14            ; b*8 rows*2048
        v_lshlrev_b32 v5, 11, v1
        v_lshl_add_u32 v5, v3, 4, v5
        v_add_u32 v5, s10, v5
        """)
        for i in range(4):
            k(f"buffer_load_dwordx4 v[{8 + 4 * i}:{11 + 4 * i}], v5, s[12:15], 0 offen offset:{128 * i}")
    else:
        srd(k, 12, 6, WS_H, S * D * 2)
        srd(k, 16, 6, WS_HN, S * D * 2)
        for i in range(4):
            so = ["0", "s20", "s21", "s22"][i]
            k(f"buffer_load_dwordx4 v[{8 + 4 * i}:{11 + 4 * i}], v4, s[12:15], {so} offen")
    k("v_mov_b32 v6, 0")
    k("v_mov_b32 v7, 0")
    k("s_mov_b32 s23, 0xffff0000")
    for i in range(4):
        k(f"s_waitcnt vmcnt({3 - i})")
        for d in range(4):
            src = 8 + 4 * i + d
            lo, hi = 32 + 8 * i + 2 * d, 33 + 8 * i + 2 * d
            k(f"v_lshlrev_b32 v{lo}, 16, v{src}")
            k(f"v_and_b32 v{hi}, s23, v{src}")
            k(f"v_add_f32 v6, v6, v{lo}")
            k(f"v_fmac_f32 v7, v{lo}, v{lo}")
            k(f"v_add_f32 v6, v6, v{hi}")
            k(f"v_fmac_f32 v7, v{hi}, v{hi}")
    k("""
    s_nop 1
    v_add_f32_dpp v6, v6, v6 row_ror:8 row_mask:0xf bank_mask:0xf
    v_add_f32_dpp v7, v7, v7 row_ror:8 row_mask:0xf bank_mask:0xf
    s_nop 1
    v_mov_b32 v24, v6
    v_mov_b32 v25, v7
    s_nop 1
    v_permlane16_swap_b32 v6, v24
    v_permlane16_swap_b32 v7, v25
    s_nop 1
    v_add_f32 v6, v6, v24
    v_add_f32 v7, v7, v25
    s_nop 0
    v_mov_b32 v24, v6
    v_mov_b32 v25, v7
    s_nop 1
    v_permlane32_swap_b32 v6, v24
    v_permlane32_swap_b32 v7, v25
    s_nop 1
    v_add_f32 v6, v6, v24
    v_add_f32 v7, v7, v25
    v_lshlrev_b32 v26, 5, v1
    v_lshl_add_u32 v27, v2, 3, v26
    ds_write_b64 v27, v[6:7]
    s_waitcnt lgkmcnt(0)
    s_barrier
    ds_read_b128 v[64:67], v26
    ds_read_b128 v[68:71], v26 offset:16
    s_waitcnt lgkmcnt(0)
    v_add_f32 v6, v64, v66
    v_add_f32 v7, v65, v67
    v_add_f32 v24, v68, v70
    v_add_f32 v25, v69, v71
    v_add_f32 v6, v6, v24
    v_add_f32 v7, v7, v25
    v_mul_f32 v6, 0x3a800000, v6       ; mean
    v_mul_f32 v7, 0x3a800000, v7       ; E[x^2]
    v_fma_f32 v7, -v6, v6, v7          ; var
    v_max_f32 v7, 0, v7
    v_cvt_pk_bf16_f32 v24, v6, v7
    v_lshlrev_b32 v6, 16, v24          ; mean_bf
    v_and_b32 v7, s23, v24             ; var_bf
    v_add_f32 v7, 0x3727c5ac, v7       ; + 1e-5
    v_cvt_pk_bf16_f32 v24, v7, v7
    v_and_b32 v7, s23, v24
    v_sqrt_f32 v7, v7
    s_nop 0
    v_cvt_pk_bf16_f32 v24, v7, v7
    v_and_b32 v7, s23, v24
    v_rcp_f32 v7, v7
    s_nop 0
    """)
    for i in range(4):
        for d in range(4):
            lo, hi = 32 + 8 * i + 2 * d, 33 + 8 * i + 2 * d
            dst = 8 + 4 * i + d
            k(f"v_sub_f32 v{lo}, v{lo}, v6")
            k(f"v_sub_f32 v{hi}, v{hi}, v6")
            k(f"v_cvt_pk_bf16_f32 v24, v{lo}, v{hi}")
            k(f"v_lshlrev_b32 v{lo}, 16, v24")
            k(f"v_and_b32 v{hi}, s23, v24")
            k(f"v_mul_f32 v{lo}, v{lo}, v7")
            k(f"v_mul_f32 v{hi}, v{hi}, v7")
            k(f"v_cvt_pk_bf16_f32 v{dst}, v{lo}, v{hi}")
        so = ["0", "s20", "s21", "s22"][i]
        k(f"buffer_store_dwordx4 v[{8 + 4 * i}:{11 + 4 * i}], v4, s[16:19], {so} offen")
    k.label("done")
    k("s_endpgm")
    return k


def cfg(**kw):
    c = GemmCfg()
    c.__dict__.update(kw)
    return c


def build(kernels, path):
    hdr = open("sequential_preLN__mha_block__glu_gated_glu__prompt.s.ref").read().split("\n")
    hdr = [l for l in hdr if l.startswith(";") and "@launch" not in l and "Override" not in l and "grid=ceil" not in l]
    out = "\n".join(hdr) + "\n" + "\n".join(k.launch() for k in kernels) + "\n"
    out += '.amdgcn_target "amdgcn-amd-amdhsa--gfx950"\n.text\n'
    seen = []
    for k in kernels:
        if k.name not in seen:
            k.idx = len(seen)
            out += k.text()
            seen.append(k.name)
    out += '.section .rodata,"a"\n'
    seen = []
    for k in kernels:
        if k.name not in seen:
            out += k.desc()
            seen.append(k.name)
    open(path, "w").write(out)


class GemmCfg:
    pass
```

```python
from gen_common import *
from engine import *

M32 = "v_mfma_f32_32x32x16_bf16"
SC = " sc1"


def rnd_hi(dst, src, smask):
    return [f"v_cvt_pk_bf16_f32 v{dst}, v{src}, v{src}", f"v_and_b32 v{dst}, s{smask}, v{dst}"]


def ln_scalars(b, t, sig, rs, x, smask, L):
    o = [f"v_mov_b32 v{t}, v{b}", f"v_mov_b32 v{t + 1}, v{b + 1}", "s_nop 1",
         f"v_permlane32_swap_b32 v{b}, v{t}", f"v_permlane32_swap_b32 v{b + 1}, v{t + 1}", "s_nop 1",
         f"v_add_f32 v{b}, v{b}, v{t}", f"v_add_f32 v{b + 1}, v{b + 1}, v{t + 1}",
         f"v_mul_f32 v{b}, 0xba800000, v{b}",
         f"v_mul_f32 v{b + 1}, 0x3a800000, v{b + 1}",
         f"v_fma_f32 v{b + 1}, -v{b}, v{b}, v{b + 1}",
         f"v_max_f32 v{b + 1}, 0, v{b + 1}"]
    o += rnd_hi(b + 1, b + 1, smask)
    o += [f"v_add_f32 v{b + 1}, 0x3727c5ac, v{b + 1}"]
    o += rnd_hi(b + 1, b + 1, smask)
    o += [f"v_sqrt_f32 v{b + 1}, v{b + 1}", "s_nop 0"]
    o += rnd_hi(sig, b + 1, smask)
    o += [f"v_rcp_f32 v{rs}, v{sig}"]
    o += rnd_hi(t, b, smask)
    o += [f"v_sub_f32 v{t + 1}, v{b}, v{t}"]
    o += rnd_hi(t + 2, t + 1, smask)
    o += [f"v_sub_f32 v{t + 3}, v{t + 1}, v{t + 2}",
          f"v_cvt_pk_bf16_f32 v{x}, v{t}, v{t + 2}",
          f"v_cvt_pk_bf16_f32 v{x + 2}, v{t}, v{t + 3}",
          f"v_cmp_gt_u32 vcc, 32, v{L}",
          f"v_mov_b32 v{x + 3}, 0", "s_nop 0",
          f"v_cndmask_b32 v{x}, 0, v{x}, vcc",
          f"v_cndmask_b32 v{x + 2}, 0, v{x + 2}, vcc",
          f"v_mov_b32 v{x + 1}, v{x}"]
    return o


def cs_split(c, t, f, smask):
    o = rnd_hi(t, c, smask)
    o += [f"v_sub_f32 v{t + 1}, v{c}, v{t}"]
    o += rnd_hi(t + 2, t + 1, smask)
    o += [f"v_sub_f32 v{t + 1}, v{t + 1}, v{t + 2}",
          f"v_cvt_pk_bf16_f32 v{f}, v{t}, v{t}",
          f"v_cvt_pk_bf16_f32 v{f + 1}, v{t + 2}, v{t + 2}",
          f"v_cvt_pk_bf16_f32 v{f + 2}, v{t + 1}, v{t}",
          f"v_mov_b32 v{f + 3}, 0"]
    return o


def srd_lines(dst, ptr, off, nbytes):
    o = []
    if off:
        o += [f"s_add_u32 s{dst}, s{ptr}, {off}\ns_addc_u32 s{dst + 1}, s{ptr + 1}, 0"]
    else:
        o += [f"s_mov_b32 s{dst}, s{ptr}", f"s_mov_b32 s{dst + 1}, s{ptr + 1}"]
    return o + [f"s_mov_b32 s{dst + 2}, {nbytes}", f"s_mov_b32 s{dst + 3}, 0x20000"]


def gen_gemm(c):
    MT, NT, BK, KK = c.MT, c.NT, c.BK, c.K
    SS = BK // 16
    NST = KK // BK
    RA = c.RA
    PW, RL, UN = 3, 4, 4
    DW = c.DW
    NF = NT * DW
    kind = c.kind
    alds = kind == "qkv"
    assert NST % UN == 0 and UN % RA == 0
    if kind == "gu":
        UPOFF = BK * 224 + 128
        SLOT = UPOFF + BK * 224
        NDW = (BK * 14 * 2) // 64 // 4
        RSTR, NH, MAXOFF = 224, 1, BK * 224
    else:
        NP = NT // 2
        SLOT = NP * BK * 128
        NDW = NP * (BK // 8) // 4
        RSTR, NH, MAXOFF = 128, 2, SLOT
    lds = SLOT * RL
    ABASE, ASLOT = lds, 128 * BK * 2
    NDA = 4 if alds else 0
    if alds:
        lds += ASLOT * RL
    NDMA = NDW + NDA
    SPG = max(1, min(RL, (65536 - MAXOFF) // SLOT + 1))
    while RL % SPG:
        SPG -= 1
    NG = RL // SPG
    nA = SS * MT
    big = MT * NT * 16 > 128
    ACC = 0
    nacc = MT * NT * 16
    v = nacc
    V_RB = v; v += NH * NG
    V_AO = v; v += 2
    V_WO = v; v += NDMA
    V_LANE = v; v += 1
    V_AR = v; v += 4 if alds else 0
    v = (v + 3) // 4 * 4
    V_ST = v; v += 4
    V_T = v; v += 8
    if big:
        V_XF = v; v += 8
        AF, af = 0, "a"
        WF, wf = RA * nA * 4, "a"
        A_ST = WF + NF * 4
        A_AUG = A_ST + 32
        nagpr = A_AUG + NT * 4 + 1
        DUMMY = f"a{A_AUG + NT * 4}"
        nv = v
    else:
        AF, af = v, "v"; v += 8 if alds else RA * nA * 4
        WF, wf = v, "v"; v += NF * 4
        V_X = v; v += 16
        V_P = v; v += 0 if alds else NT * 8
        V_CS = v; v += 16
        if alds:
            V_AUG = v; v += 24
            V_XF = v; v += 4
            V_RSR = v; v += 16
        DUMMY = f"v{v}"; v += 1
        V_PC = v; v += 1
        nagpr = 0
        nv = v
    assert nv <= 256, nv
    k = K(c.name, 256, 320 if alds else 256, lds, nv, nagpr)

    def areg(t, ss, i):
        if alds:
            return vr(AF + (ss % 2) * 4, 4, af)
        return vr(AF + (((t % RA) * SS + ss) * MT + i) * 4, 4, af)

    def wreg(slot, half=None):
        b = WF + slot * 4
        return vr(b, 4, wf) if half is None else vr(b + 2 * half, 2, wf)

    def acc(j, i):
        return ACC + (j * MT + i) * 16

    S_A = [4, 8]
    S_W = 12
    S_AOFF, S_WOFF, S_WBASE, S_MASK, S_CNT, S_WAVE, S_RB, S_CB, S_MT, S_ABASE = 16, 17, 18, 19, 20, 21, 22, 23, 24, 25
    S_P0, S_P1, S_WS, S_P2 = 26, 28, 30, 32
    S_O, S_R, S_TMP, S_EX, S_D, S_C = 36, 40, 44, 52, 56, 92
    S_PR = 52
    S_KI, S_K0 = 34, 35

    wptr = {"qkv": KA_WQKV, "out": KA_WO, "gu": KA_WG, "down": KA_WD}[kind]
    NW = {"qkv": 3 * D, "out": D, "gu": F, "down": D}[kind]
    if kind != "down":
        k(f"s_load_dwordx2 s[{S_P0}:{S_P0 + 1}], s[0:1], {wptr}")
    k(f"s_load_dwordx2 s[{S_WS}:{S_WS + 1}], s[0:1], {KA_WS}")
    if kind == "gu":
        k(f"s_load_dwordx2 s[{S_P1}:{S_P1 + 1}], s[0:1], {KA_WU}")
    if kind == "qkv":
        k(f"s_load_dwordx2 s[{S_P1}:{S_P1 + 1}], s[0:1], {KA_DBG}")
    if kind != "gu":
        k(f"s_load_dwordx2 s[{S_P2}:{S_P2 + 1}], s[0:1], {KA_OUT if kind == 'down' else KA_X}")
    L, TT = V_LANE, V_T
    k(f"""
    s_cmp_ge_u32 s2, 256
    s_cbranch_scc1 {k.L('done')}
    v_lshrrev_b32 v{TT}, 6, v0
    v_and_b32 v{L}, 63, v0
    v_readfirstlane_b32 s{S_WAVE}, v{TT}
    s_and_b32 s{S_TMP}, s2, 7
    s_lshr_b32 s{S_TMP + 1}, s2, 3
    """)
    if kind == "qkv":
        xs, xm, isx, im, rsh, csh = 2, 3, 2, 3, 3, 2
    elif kind == "gu":
        xs, xm, isx, im, rsh, csh = 2, 3, 3, 7, 2, 3
    else:
        xs, xm, isx, im, rsh, csh = 1, 1, 3, 7, 2, 3
    k(f"""
    s_lshr_b32 s{S_RB}, s{S_TMP}, {xs}
    s_lshl_b32 s{S_RB}, s{S_RB}, {rsh}
    s_lshr_b32 s{S_TMP + 2}, s{S_TMP + 1}, {isx}
    s_add_u32 s{S_RB}, s{S_RB}, s{S_TMP + 2}
    s_and_b32 s{S_CB}, s{S_TMP}, {xm}
    s_lshl_b32 s{S_CB}, s{S_CB}, {csh}
    s_and_b32 s{S_TMP + 2}, s{S_TMP + 1}, {im}
    s_add_u32 s{S_CB}, s{S_CB}, s{S_TMP + 2}
    s_lshl_b32 s{S_MT}, s{S_RB}, 2
    s_add_u32 s{S_MT}, s{S_MT}, s{S_WAVE}
    """)
    if alds:
        k(f"s_cmp_eq_u32 s{S_WAVE}, 4")
        k(f"s_cbranch_scc1 {k.L('helper')}")
    if MT > 1:
        k(f"s_mul_i32 s{S_MT}, s{S_MT}, {MT}")
    k(f"v_lshlrev_b32 v{V_AO}, 4, v{L}")
    k(f"v_add_u32 v{V_AO + 1}, 4096, v{V_AO}")
    if kind == "gu":
        k(f"s_lshr_b32 s{S_TMP + 3}, s{S_WAVE}, 1")
        k(f"s_mul_i32 s{S_TMP + 2}, s{S_TMP + 3}, {(BK // 2) * NW * 2}")
        k(f"s_mul_i32 s{S_TMP + 4}, s{S_CB}, 224")
        k(f"s_add_u32 s{S_TMP + 2}, s{S_TMP + 2}, s{S_TMP + 4}")
        k(f"v_add_u32 v{TT + 2}, s{S_TMP + 2}, v{V_AO}")
        k(f"v_mul_u32_u24 v{TT}, 4682, v{L}")
        for i in range(NDW):
            k(f"v_add_u32 v{TT + 1}, {64 * i * 4682}, v{TT}")
            k(f"v_lshrrev_b32 v{TT + 1}, 16, v{TT + 1}")
            k(f"v_mul_u32_u24 v{TT + 1}, {NW * 2 - 224}, v{TT + 1}")
            k(f"v_add3_u32 v{V_WO + i}, v{TT + 1}, v{TT + 2}, 0" if i == 0 else f"v_add_u32 v{TT + 2}, 1024, v{TT + 2}\nv_add_u32 v{V_WO + i}, v{TT + 1}, v{TT + 2}")
        k(f"s_and_b32 s{S_TMP + 2}, s{S_WAVE}, 1")
        k(f"s_mul_i32 s{S_TMP + 2}, s{S_TMP + 2}, {UPOFF}")
        k(f"s_mul_i32 s{S_TMP + 3}, s{S_TMP + 3}, {(BK // 2) * 224}")
        k(f"s_add_u32 s{S_WBASE}, s{S_TMP + 2}, s{S_TMP + 3}")
        dma_lds = [1024 * i for i in range(NDW)]
    elif kind == "down":
        RPW = BK // 8 // 4
        k(f"s_mul_i32 s{S_WBASE}, s{S_WAVE}, {RPW * 1024}")
        k(f"v_add_u32 v{V_WO}, s{S_WBASE}, v{V_AO}")
        for i in range(1, NDW):
            k(f"v_add_u32 v{V_WO + i}, {i * 1024}, v{V_WO}")
        k(f"s_mul_i32 s{S_TMP + 6}, s{S_CB}, {F * 128}")
        dma_lds = [1024 * i for i in range(NDW)]
    else:
        RPW = BK // 8 // 4
        k(f"v_lshrrev_b32 v{TT}, 3, v{L}")
        k(f"v_and_b32 v{TT + 1}, 7, v{L}")
        k(f"v_bfe_u32 v{TT + 2}, v{L}, 4, 1")
        k(f"v_lshlrev_b32 v{TT + 2}, 2, v{TT + 2}")
        k(f"v_xor_b32 v{TT + 2}, v{TT + 1}, v{TT + 2}")
        k(f"v_mul_u32_u24 v{TT + 3}, {NW * 2}, v{TT}")
        k(f"v_lshl_add_u32 v{TT + 3}, v{TT + 2}, 4, v{TT + 3}")
        k(f"s_mul_i32 s{S_TMP + 2}, s{S_WAVE}, {RPW * 8 * NW * 2}")
        k(f"s_lshl_b32 s{S_TMP + 3}, s{S_CB}, 7")
        k(f"s_add_u32 s{S_TMP + 2}, s{S_TMP + 2}, s{S_TMP + 3}")
        k(f"v_add_u32 v{V_WO}, s{S_TMP + 2}, v{TT + 3}")
        for i in range(1, NDW):
            t, r = i // RPW, i % RPW
            if r == 0:
                k(f"s_add_u32 s{S_PR + t}, s{S_CB}, {5 * t}")
                k(f"s_and_b32 s{S_PR + t}, s{S_PR + t}, 15")
                k(f"s_sub_u32 s{S_TMP + 3}, s{S_PR + t}, s{S_CB}")
                k(f"s_lshl_b32 s{S_TMP + 3}, s{S_TMP + 3}, 7")
                k(f"s_add_u32 s{S_TMP + 3}, s{S_TMP + 3}, {t * D * 2}")
                k(f"v_add_u32 v{V_WO + i}, s{S_TMP + 3}, v{V_WO}")
            else:
                k(f"v_add_u32 v{V_WO + i}, {r * 8 * NW * 2}, v{V_WO + t * RPW}")
        k(f"s_mul_i32 s{S_WBASE}, s{S_WAVE}, {RPW * 1024}")
        dma_lds = [(i // RPW) * BK * 128 + (i % RPW) * 1024 for i in range(NDW)]
        if alds:
            k(f"v_lshrrev_b32 v{TT + 2}, 4, v{L}")
            k(f"v_xor_b32 v{TT + 2}, v{TT + 1}, v{TT + 2}")
            k(f"v_lshlrev_b32 v{TT + 3}, 11, v{TT}")
            k(f"v_lshl_add_u32 v{V_WO + NDW}, v{TT + 2}, 4, v{TT + 3}")
            k(f"v_xor_b32 v{TT + 2}, 64, v{V_WO + NDW}")
            k(f"v_add_u32 v{V_WO + NDW + 1}, 16384, v{TT + 2}")
            k(f"v_add_u32 v{V_WO + NDW + 2}, 32768, v{V_WO + NDW}")
            k(f"v_add_u32 v{V_WO + NDW + 3}, 49152, v{TT + 2}")
            k(f"s_lshl_b32 s{S_ABASE}, s{S_WAVE}, 12")
            k(f"s_add_u32 s{S_ABASE}, s{S_ABASE}, {ABASE}")
    for i in range(MT):
        if i:
            k(f"s_add_u32 s{S_TMP + 4 + i}, s{S_TMP + 4}, {KK * 64}")
        else:
            k(f"s_mul_i32 s{S_TMP + 4}, s{S_MT}, {KK * 64}")
    k("s_waitcnt lgkmcnt(0)")
    k.stamp(0)
    if kind == "gu":
        k(f"s_bitcmp1_b32 s{S_WAVE}, 0")
        k(f"s_cselect_b32 s{S_W}, s{S_P1}, s{S_P0}")
        k(f"s_cselect_b32 s{S_W + 1}, s{S_P1 + 1}, s{S_P0 + 1}")
        k(f"s_mov_b32 s{S_W + 2}, {KK * NW * 2}")
        k(f"s_mov_b32 s{S_W + 3}, 0x20000")
    elif kind == "down":
        srd(k, S_W, S_WS, WS_WD2, F * 128, off_sgpr=S_TMP + 6)
    else:
        srd(k, S_W, S_P0, 0, KK * NW * 2)
    for i in range(MT):
        if alds:
            srd(k, S_A[0], S_P2, 0, 65536, off_sgpr=S_TMP + 4)
        else:
            srd(k, S_A[i], S_WS, c.a_off, KK * 64, off_sgpr=S_TMP + 4 + i)

    PER = NT * MT
    NM = SS * PER
    NG_ = NST * NM
    pre = [[] for _ in range(NG_)]
    post = [[] for _ in range(NG_)]
    mfma = [None] * NG_
    HS, S2 = (4, 8) if c.kperm else (8, 4)
    ASTEP = BK * 2 if alds else BK * 64
    WSTEP = BK * 128 if kind == "down" else BK * NW * 2
    cur = {"A": 0, "W": 0}

    def step(kindc, b):
        if alds:
            if cur["W"] == b:
                return []
            assert b == cur["W"] + 1
            cur["W"] = b
            first = f"s_mov_b32 s{S_KI}, 0" if b == 1 else f"s_add_u32 s{S_KI}, s{S_KI}, 1"
            return [first + f"\ns_cmp_eq_u32 s{S_KI}, s{S_K0}\ns_addc_u32 s{S_KI}, s{S_KI}, 0\ns_lshl_b32 s{S_AOFF}, s{S_KI}, 7\ns_mul_i32 s{S_WOFF}, s{S_KI}, {WSTEP}"]
        reg, st = (S_AOFF, ASTEP) if kindc == "A" else (S_WOFF, WSTEP)
        if cur[kindc] == b:
            return []
        d = b - cur[kindc]
        cur[kindc] = b
        return [f"s_add_u32 s{reg}, s{reg}, {d * st}"]

    def make_vm(op):
        if op[0] == "W":
            _, b, i = op
            if i < NDW:
                return VM(op, f"buffer_load_dwordx4 v{V_WO + i}, s[{S_W}:{S_W + 3}], s{S_WOFF} offen lds",
                          [f"s_add_u32 m0, s{S_WBASE}, {(b % RL) * SLOT + dma_lds[i]}"] + step("W", b))
            return VM(op, f"buffer_load_dwordx4 v{V_WO + i}, s[{S_A[0]}:{S_A[0] + 3}], s{S_AOFF} offen lds",
                      [f"s_add_u32 m0, s{S_ABASE}, {(b % RL) * ASLOT + (i - NDW) * 1024}"] + step("A", b))
        _, b, ss, i = op
        off = ss * 1024
        return VM(op, f"buffer_load_dwordx4 {areg(b, ss, i)}, v{V_AO + (off >> 12)}, s[{S_A[i]}:{S_A[i] + 3}], s{S_AOFF} offen offset:{off & 4095}",
                  step("A", b))

    def tr_read(fslot, t, ss, j, half):
        slot = t % RL
        if kind == "gu":
            off, h = (ss * 16 + S2 * half) * RSTR + j * 32, 0
        else:
            off, h = (j // 2) * BK * 128 + (ss * 16 + S2 * half) * RSTR, j % 2
        off += (slot % SPG) * SLOT
        assert off < 65536
        return f"ds_read_b64_tr_b16 {wreg(fslot, half)}, v{V_RB + (slot // SPG) * NH + h} offset:{off}"

    def a_read(t, ss):
        return f"ds_read_b128 {areg(t, ss, 0)}, v{V_AR + ss} offset:{(t % RL) * ASLOT}"

    frags = [(t, ss, j) for t in range(NST) for ss in range(SS) for j in range(NT)]
    first_reads = []
    bar_at = {}
    for q, (t, ss, j) in enumerate(frags):
        G0 = q * MT
        rd = [DS(("W", q, h), tr_read(q % NF, t, ss, j, h)) for h in range(2)]
        if q < NF:
            first_reads += rd
        else:
            Gr = (q - NF) * MT + MT - 1
            post[Gr] += rd
            if Gr // NM < t:
                bar_at[t] = min(bar_at.get(t, 1 << 30), Gr)
        if MT == 1 and NF >= 6:
            if q % 2 == 0:
                pre[G0] += [NEEDD(("W", q)), NEEDD(("W", q + 1))]
        else:
            pre[G0].append(NEEDD(("W", q)))
        for i in range(MT):
            a, w = areg(t, ss, i), wreg(q % NF)
            x, y = (a, w) if (kind == "qkv" and j >= 4) else (w, a)
            cin = "0" if (t == 0 and ss == 0) else vr(acc(j, i), 16)
            mfma[G0 + i] = f"{M32} {vr(acc(j, i), 16)}, {x}, {y}, {cin}"
            if j == 0:
                pre[G0 + i].append(NEEDD(("A", t, ss)) if alds else NEEDV(("A", t, ss, i)))
        if alds and j == 0:
            rd = DS(("A", t, ss), a_read(t, ss))
            if q == 0:
                first_reads.insert(0, rd)
            else:
                post[G0 - PER + 1].append(rd)
    if MT > 1:
        bar_at = {t: g - (MT - 1) for t, g in bar_at.items()}
    for t, g in bar_at.items():
        pre[g] = [NEEDV(("W", t, i)) for i in range(NDMA)] + pre[g] + [Item("bar")]
    bar_gap = bar_at[1]

    wpos = []
    for i in range(NDMA):
        p = bar_gap + int((i + 0.3) * NM / NDMA)
        while (MT > 1 and p % MT == MT - 1) or (not alds and p % PER == PER - 1):
            p += 1
        wpos.append(p)
    assert wpos[-1] < bar_gap + NM and len(set(wpos)) == NDMA, wpos
    worder = list(range(NDMA))
    if alds:
        worder = [6, 0, 1, 7, 2, 3, 8, 4, 9, 5]
    ops = []
    for b in range(NST):
        for n, i in enumerate(worder):
            ops.append(((b - PW) * NM + wpos[n], 1, ("W", b, i)))
        if not alds:
            for ss in range(SS):
                for i in range(MT):
                    ops.append(((b - RA) * NM + ss * PER + (NT - 1) * MT + i, 0, ("A", b, ss, i)))
    ops.sort()
    pre_ops = [o for o in ops if o[2][1] == 0 and o[2][0] == "W"] + [o for o in ops if o[2][1] == 0 and o[2][0] == "A"]
    queue = [o for o in ops if o[2][1] != 0]
    pre_ops2 = []
    if alds:
        pre_ops2 = [o for o in queue if o[2][1] == 1]
        queue = [o for o in queue if o[2][1] != 1]
    sim = Sim()

    def out(items):
        for l in sim.emit(items):
            k(l)

    if alds:
        k(f"s_add_u32 s{S_K0}, s{S_RB}, s{S_CB}")
        k(f"s_and_b32 s{S_K0}, s{S_K0}, 15")
        k(f"s_lshl_b32 s{S_AOFF}, s{S_K0}, 7")
        k(f"s_mul_i32 s{S_WOFF}, s{S_K0}, {WSTEP}")
    else:
        k(f"s_mov_b32 s{S_AOFF}, 0")
        k(f"s_mov_b32 s{S_WOFF}, 0")
    out([make_vm(o[2]) for o in pre_ops])
    out([make_vm(o[2]) for o in pre_ops2])
    k(f"s_mov_b32 s{S_MASK}, 0xffff0000")
    k(f"v_bfe_u32 v{TT}, v{L}, 2, 2")
    k(f"v_lshrrev_b32 v{TT + 1}, 5, v{L}")
    k(f"v_mul_u32_u24 v{TT + 3}, {HS}, v{TT + 1}")
    k(f"v_add_u32 v{TT + 3}, v{TT + 3}, v{TT}")
    k(f"v_mul_u32_u24 v{TT + 3}, {RSTR}, v{TT + 3}")
    k(f"v_and_b32 v{TT + 2}, 3, v{L}")
    k(f"v_lshl_add_u32 v{TT + 3}, v{TT + 2}, 3, v{TT + 3}")
    k(f"v_bfe_u32 v{TT + 2}, v{L}, 4, 1")
    if kind == "gu":
        k(f"v_mul_u32_u24 v{TT + 2}, {UPOFF}, v{TT + 2}")
        k(f"v_add_u32 v{V_RB}, v{TT + 3}, v{TT + 2}")
    else:
        k(f"v_lshl_add_u32 v{TT + 3}, v{TT + 2}, 5, v{TT + 3}")
        k(f"v_bfe_u32 v{TT + 2}, v{L}, 3, 1")
        k(f"v_lshl_add_u32 v{V_RB}, v{TT + 2}, 6, v{TT + 3}")
        k(f"v_xor_b32 v{V_RB + 1}, 64, v{V_RB}")
    for g in range(1, NG):
        for h in range(NH):
            k(f"v_add_u32 v{V_RB + g * NH + h}, {g * SPG * SLOT}, v{V_RB + h}")
    V_M8 = V_ST + 3

    def spread(G0, G1, items, per=2):
        g = G0
        n = 0
        for it in items:
            if isinstance(it, str):
                it = T(it)
            post[g].append(it)
            if it.kind not in ("needv", "needd"):
                n += 1
            if n >= per:
                n = 0
                g += 1
                assert g <= G1, (g, G1)
        return g

    tail_code = []
    x_reads = []
    if alds:
        k(f"v_and_b32 v{TT}, 31, v{L}")
        k(f"v_bfe_u32 v{TT + 2}, v{L}, 1, 3")
        k(f"v_xor_b32 v{TT + 2}, v{TT + 2}, v{TT + 1}")
        k(f"v_lshlrev_b32 v{TT + 3}, 7, v{TT}")
        k(f"v_lshl_add_u32 v{TT + 3}, v{TT + 2}, 4, v{TT + 3}")
        k(f"v_add_u32 v{V_AR}, s{S_ABASE}, v{TT + 3}")
        for ss in range(1, 4):
            k(f"v_xor_b32 v{V_AR + ss}, {32 * ss}, v{V_AR}")
        k(f"s_and_b32 s{S_TMP + 2}, s{S_WAVE}, 1")
        k(f"s_lshl_b32 s{S_TMP + 2}, s{S_TMP + 2}, 6")
        k(f"v_xor_b32 v{TT + 4}, s{S_TMP + 2}, v{V_RB}")
        k(f"s_lshr_b32 s{S_TMP + 3}, s{S_WAVE}, 1")
        k(f"s_lshl_b32 s{S_TMP + 3}, s{S_TMP + 3}, 13")
        k(f"v_add_u32 v{TT + 5}, s{S_TMP + 3}, v{TT + 4}")
        SEL = V_XF
        k(f"v_lshrrev_b32 v{TT}, 4, v{L}")
        k(f"v_xor_b32 v{TT}, v{TT}, v{L}")
        k(f"v_and_b32 v{TT}, 1, v{TT}")
        k(f"v_cmp_eq_u32 vcc, 0, v{TT}")
        k(f"v_mov_b32 v{TT + 2}, 0x3f803f80")
        k(f"v_mov_b32 v{V_ST}, 0")
        k(f"v_mov_b32 v{V_ST + 1}, 0")
        for r in range(4):
            k(f"v_cndmask_b32 v{SEL + r}, 0, v{TT + 2}, vcc")
        XA, WA, D0, D1 = V_X, V_CS, V_RSR, V_RSR + 4
        for ss in range(4):
            x_reads.append(DS(("xa", ss), f"ds_read_b128 v[{XA + 4 * ss}:{XA + 4 * ss + 3}], v{V_AR + ss}"))
        for p in range(2):
            for ss in range(4):
                for h in range(2):
                    off = (ss * 16 + S2 * h) * RSTR + (16384 if p else 0)
                    b = WA + p * 16 + ss * 4 + h * 2
                    x_reads.append(DS(("wa", p, ss, h), f"ds_read_b64_tr_b16 v[{b}:{b + 1}], v{TT + 4 if p else TT + 5} offset:{off}"))
        gx = spread(0, NM, x_reads, per=1) - 12
        x_reads = []
        for n_, itx in enumerate(pre[bar_at[2]]):
            if itx.kind == "bar":
                pre[bar_at[2]].insert(n_, NEEDD(("wa", 1, 3, 1)))
                break
        it = srd_lines(S_R, S_WS, WS_ST1, 64 * 4096) + srd_lines(S_O, S_WS, WS_CS1, 16 * 12288)
        for ss in range(4):
            it.append(NEEDD(("xa", ss)))
            for d in range(4):
                s_ = XA + 4 * ss + d
                it += [f"v_lshlrev_b32 v{TT}, 16, v{s_}", f"v_and_b32 v{TT + 1}, s{S_MASK}, v{s_}",
                       f"v_add_f32 v{V_ST}, v{V_ST}, v{TT}", f"v_fmac_f32 v{V_ST + 1}, v{TT}, v{TT}",
                       f"v_add_f32 v{V_ST}, v{V_ST}, v{TT + 1}", f"v_fmac_f32 v{V_ST + 1}, v{TT + 1}, v{TT + 1}"]
                if d % 2 == 1:
                    n = ss * 2 + d // 2
                    p, s2_ = n // 4, n % 4
                    dd = D1 if p else D0
                    it.append(NEEDD(("wa", p, s2_)))
                    it.append(f"v_mfma_f32_16x16x32_bf16 {vr(dd, 4)}, {vr(WA + p * 16 + s2_ * 4, 4)}, {vr(SEL, 4)}, {'0' if s2_ == 0 else vr(dd, 4)}")
        it += [f"v_mov_b32 v{TT}, v{V_ST}", f"v_mov_b32 v{TT + 1}, v{V_ST + 1}",
               f"v_lshlrev_b32 v{TT + 5}, 3, v{L}", f"v_and_b32 v{TT + 4}, 1, v{L}",
               f"v_permlane32_swap_b32 v{V_ST}, v{TT}", f"v_permlane32_swap_b32 v{V_ST + 1}, v{TT + 1}",
               f"s_lshl_b32 s{S_TMP + 2}, s{S_MT}, 12", f"s_lshl_b32 s{S_TMP + 3}, s{S_CB}, 8",
               f"s_add_u32 s{S_TMP + 2}, s{S_TMP + 2}, s{S_TMP + 3}",
               f"v_add_f32 v{TT}, v{V_ST}, v{TT}", f"v_add_f32 v{TT + 1}, v{V_ST + 1}, v{TT + 1}",
               f"v_lshlrev_b32 v{TT + 4}, 6, v{TT + 4}", f"v_and_b32 v{TT + 6}, 48, v{L}",
               f"v_mov_b32_dpp v{TT + 2}, v{TT} quad_perm:[1,1,3,3] row_mask:0xf bank_mask:0xf",
               f"v_mov_b32_dpp v{TT + 3}, v{TT + 1} quad_perm:[1,1,3,3] row_mask:0xf bank_mask:0xf",
               f"v_add_u32 v{TT + 4}, v{TT + 4}, v{TT + 6}",
               VM(("ST", 0), f"s_mov_b32 exec_lo, 0x55555555\ns_mov_b32 exec_hi, 0\nbuffer_store_dwordx4 v[{TT}:{TT + 3}], v{TT + 5}, s[{S_R}:{S_R + 3}], s{S_TMP + 2} offen sc1\ns_mov_b64 exec, -1"),
               f"s_mul_i32 s{S_TMP + 2}, s{S_RB}, 12288", f"s_mul_i32 s{S_TMP + 3}, s{S_CB}, 768",
               f"s_add_u32 s{S_TMP + 2}, s{S_TMP + 2}, s{S_TMP + 3}",
               f"s_lshl_b32 s{S_TMP + 3}, s{S_WAVE}, 7", f"s_add_u32 s{S_TMP + 3}, s{S_TMP + 3}, s{S_TMP + 2}",
               f"s_and_b32 s{S_TMP + 5}, s{S_WAVE}, 1", f"s_lshl_b32 s{S_TMP + 5}, s{S_TMP + 5}, 7",
               f"s_add_u32 s{S_TMP + 2}, s{S_TMP + 2}, s{S_TMP + 5}",
               VM(("ST", 1), f"s_mov_b32 exec_lo, 0x00030003\ns_mov_b32 exec_hi, 0x00030003\nbuffer_store_dwordx4 v[{D0}:{D0 + 3}], v{TT + 4}, s[{S_O}:{S_O + 3}], s{S_TMP + 3} offen sc1\ns_mov_b64 exec, -1"),
               VM(("ST", 2), f"s_mov_b32 exec_lo, 0x00030003\ns_mov_b32 exec_hi, 0x00030003\nbuffer_store_dwordx4 v[{D1}:{D1 + 3}], v{TT + 4}, s[{S_O}:{S_O + 3}], s{S_TMP + 2} offen offset:512 sc1\ns_mov_b64 exec, -1")]
        BSIG, BPOL = 4, 9
        g2 = bar_at[BSIG]
        gx = spread(gx, g2 - 30, it, per=3)
        pre[g2] = [NEEDV(("ST", i)) for i in range(3)] + pre[g2]
        N0, F0 = TT + 2, TT + 4
        def spin(lbl, load, cmp_, want):
            return [f"s_mov_b32 s{S_TMP + 6}, 0x8000", f"{k.L(lbl)}:", "s_waitcnt vmcnt(0)", cmp_, "s_nop 1", f"s_cmp_eq_u64 vcc, {want}",
                    f"s_cbranch_scc1 {k.L(lbl + '_ok')}", "s_sleep 2", load, f"s_sub_u32 s{S_TMP + 6}, s{S_TMP + 6}, 1",
                    f"s_cmp_lg_u32 s{S_TMP + 6}, 0", f"s_cbranch_scc1 {k.L(lbl)}", f"{k.L(lbl + '_ok')}:"]
        h = [f"{k.L('helper')}:", f"s_memrealtime s[{S_TMP + 2}:{S_TMP + 3}]", f"v_mov_b32 v{TT + 1}, 0", "s_waitcnt lgkmcnt(0)"]
        h += srd_lines(S_D, S_P1, 0, 256)
        h += ["s_cmp_lg_u32 s2, 0", f"s_cbranch_scc1 {k.L('nononce')}",
              f"s_or_b32 s{S_TMP + 2}, s{S_TMP + 2}, 1", f"v_mov_b32 v{N0}, s{S_TMP + 2}", f"v_mov_b32 v{N0 + 1}, s{S_TMP + 3}", "s_mov_b64 exec, 1",
              f"buffer_store_dwordx2 v[{N0}:{N0 + 1}], v{TT + 1}, s[{S_D}:{S_D + 3}], 0 offen sc1", "s_mov_b64 exec, -1", "s_waitcnt vmcnt(0)", f"{k.L('nononce')}:"]
        h += code_srd(S_C, k.L("pc0"), k.L("end"), back=True) + [f"v_lshlrev_b32 v{TT}, 7, v{L}", f"s_mov_b32 s{S_TMP}, 8192", f"s_mov_b32 s{S_TMP + 1}, 16384"]
        h += [f"buffer_load_dword v{TT + 6}, v{TT}, s[{S_C}:{S_C + 3}], {so} offen" for so in ("0", f"s{S_TMP}", f"s{S_TMP + 1}")]
        nl = f"buffer_load_dwordx2 v[{N0}:{N0 + 1}], v{TT + 1}, s[{S_D}:{S_D + 3}], 0 offen sc1"
        h += ["s_barrier", nl, "s_barrier", "s_barrier"] + spin("spinn", nl, f"v_cmp_eq_u32 vcc, 0, v{N0}", "0")
        h += srd_lines(S_R, S_WS, WS_FLG, 256 * 128)
        h += [f"v_and_b32 v{TT + 6}, 15, v{L}", f"s_lshl_b32 s{S_TMP + 4}, s{S_RB}, 4", f"v_add_u32 v{TT + 7}, s{S_TMP + 4}, v{TT + 6}",
              f"v_lshlrev_b32 v{TT + 6}, 4, v{TT + 6}", f"v_add_u32 v{TT + 6}, s{S_CB}, v{TT + 6}", f"v_and_b32 v{F0}, 16, v{L}",
              f"v_cmp_eq_u32 vcc, 0, v{F0}", f"s_add_u32 s{S_TMP + 4}, s{S_TMP + 4}, s{S_CB}", f"s_lshl_b32 s{S_TMP + 4}, s{S_TMP + 4}, 7",
              f"v_cndmask_b32 v{TT + 7}, v{TT + 6}, v{TT + 7}, vcc", f"v_lshlrev_b32 v{TT + 7}, 7, v{TT + 7}"]
        h += ["s_barrier"] * (BSIG - 2)
        h += ["s_mov_b64 exec, 1", f"buffer_store_dwordx2 v[{N0}:{N0 + 1}], v{TT + 1}, s[{S_R}:{S_R + 3}], s{S_TMP + 4} offen sc1", "s_mov_b64 exec, -1"]
        pl = f"buffer_load_dwordx2 v[{F0}:{F0 + 1}], v{TT + 7}, s[{S_R}:{S_R + 3}], 0 offen sc1"
        h += ["s_barrier"] * 2
        h += code_srd(S_C, c.nxt, c.nxt_end) + [f"buffer_load_dword v{TT + 6}, v{TT}, s[{S_C}:{S_C + 3}], 0 offen"]
        h += ["s_barrier"] * (BPOL - BSIG - 4)
        h += [pl, "s_barrier"] + spin("spinf", pl, f"v_cmp_eq_u64 vcc, v[{N0}:{N0 + 1}], v[{F0}:{F0 + 1}]", "-1") + ["s_barrier", "s_endpgm"]
        tail_code += h
        t0 = NST - 4
        tp = BPOL - 2
        g = bar_at[BPOL]
        post[tp * NM] += [T(f"v_lshlrev_b32 v{TT}, 2, v{L}")]
        it = [f"v_and_b32 v{TT + 2}, 31, v{L}", f"v_lshlrev_b32 v{TT + 2}, 3, v{TT + 2}", f"v_lshrrev_b32 v{TT + 3}, 5, v{L}",
              f"v_lshl_add_u32 v{TT + 2}, v{TT + 3}, 11, v{TT + 2}", f"s_lshl_b32 s{S_TMP + 2}, s{S_MT}, 12",
              f"s_min_u32 s{S_TMP + 5}, s{S_WAVE}, 2", f"s_mul_i32 s{S_TMP + 3}, s{S_CB}, 768", f"s_lshl_b32 s{S_TMP + 6}, s{S_TMP + 5}, 8",
              f"s_add_u32 s{S_TMP + 3}, s{S_TMP + 3}, s{S_TMP + 6}"]
        spread(tp * NM + 1, (tp + 1) * NM, it, per=1)
        it = []
        for sl in range(16):
            it.append(VM(("CSL", sl), f"buffer_load_dword v{V_CS + sl}, v{TT}, s[{S_O}:{S_O + 3}], s{S_TMP + 3} offen sc1",
                         [f"s_add_u32 s{S_TMP + 3}, s{S_TMP + 3}, 12288"] if sl else []))
        for q in range(8):
            it.append(VM(("STL", q), f"buffer_load_dwordx2 v[{V_X + 2 * q}:{V_X + 2 * q + 1}], v{TT + 2}, s[{S_R}:{S_R + 3}], s{S_TMP + 2} offen offset:{q * 256} sc1"))
        g = spread(g, g + 2 * NM, it, per=1) + 12
        it = [NEEDV(("CSL", 15))] + [f"v_add_f32 v{V_CS}, v{V_CS}, v{V_CS + sl}" for sl in range(1, 16)]
        it += cs_split(V_CS, V_CS + 1, V_CS + 4, S_MASK)
        it += [f"s_lshl_b32 s{S_TMP + 6}, s{S_TMP + 5}, 10", f"v_add_u32 v{TT + 3}, s{S_TMP + 6}, v{V_AO}"]
        it += [NEEDV(("STL", 7))]
        for q in range(1, 8):
            it += [f"v_add_f32 v{V_X}, v{V_X}, v{V_X + 2 * q}", f"v_add_f32 v{V_X + 1}, v{V_X + 1}, v{V_X + 2 * q + 1}"]
        it += ln_scalars(V_X, V_X + 4, V_ST + 1, V_ST, V_XF, S_MASK, L)
        it += [f"s_lshl_b32 s{S_TMP + 6}, s{S_WAVE}, 7", f"v_and_b32 v{TT + 4}, 31, v{L}", f"v_lshlrev_b32 v{TT + 5}, 4, v{TT + 4}",
               f"v_lshlrev_b32 v{TT + 4}, 2, v{TT + 4}", f"v_add_u32 v{TT + 4}, s{S_TMP + 6}, v{TT + 4}",
               f"v_lshrrev_b32 v{TT + 6}, 5, v{L}", f"v_lshlrev_b32 v{TT + 6}, 4, v{TT + 6}", f"v_add_u32 v{TT + 6}, s{S_TMP + 6}, v{TT + 6}",
               f"v_mul_f32 v{V_ST + 2}, {f32bits(LOG2E / math.sqrt(DH)):#x}, v{V_ST}"]
        g = spread(g, bar_at[NST - 1] - 4, it, per=2)
        g = max(g + 1, (t0 + 2) * NM)
        post[g].append(DS(("AUGW",), f"ds_write_b128 v{TT + 3}, v[{V_CS + 4}:{V_CS + 7}]"))
        post[g + 1].append(DS(("RSW",), f"ds_write_b32 v{TT + 4}, v{V_ST} offset:4096"))
        gb = bar_at[NST - 1]
        pre[gb] = [NEEDD(("AUGW",)), NEEDD(("RSW",))] + pre[gb]
        it = [DS(("AUG", j), f"ds_read_b128 v[{V_AUG + 4 * j}:{V_AUG + 4 * j + 3}], v{TT + 5} offset:{j * 512}") for j in range(6)]
        it += [DS(("RSR", a), f"ds_read_b128 v[{V_RSR + 4 * a}:{V_RSR + 4 * a + 3}], v{TT + 6} offset:{4096 + a * 32}") for a in range(4)]
        spread(gb, NG_, it, per=1)
    elif kind == "gu":
        it = srd_lines(S_R, S_WS, WS_ST2, 64 * 4096) + srd_lines(S_O, S_WS, WS_AUG, 32 * 3584) + [
            f"v_and_b32 v{TT}, 31, v{L}", f"v_lshlrev_b32 v{TT + 2}, 4, v{TT}", f"v_lshlrev_b32 v{TT}, 3, v{TT}",
            f"v_lshrrev_b32 v{TT + 1}, 5, v{L}", f"v_lshl_add_u32 v{TT}, v{TT + 1}, 11, v{TT}",
            f"s_lshl_b32 s{S_TMP + 2}, s{S_MT}, 12", f"s_add_u32 s{S_TMP + 3}, s{S_TMP + 2}, 4096", f"s_mul_i32 s{S_TMP + 4}, s{S_CB}, 3584"]
        t0 = NST - 4
        g = spread(t0 * NM, t0 * NM + 20, it, per=1)
        gs = [x for x in range((t0 + 1) * NM + bar_gap, NG_) if x % 2 == 0]
        n = 0
        for i in range(MT):
            for q in range(8):
                b = A_ST + i * 16 + q * 2
                post[gs[n]].append(VM(("STL", i, q), f"buffer_load_dwordx2 a[{b}:{b + 1}], v{TT}, s[{S_R}:{S_R + 3}], s{S_TMP + 2 + i} offen offset:{q * 256}"))
                n += 1
        for j in range(NT):
            post[gs[n]].append(VM(("AUG", j), f"buffer_load_dwordx4 a[{A_AUG + 4 * j}:{A_AUG + 4 * j + 3}], v{TT + 2}, s[{S_O}:{S_O + 3}], s{S_TMP + 4} offen offset:{j * 512}"))
            n += 1
        spread(t0 * NM + 24, NG_, code_srd(S_C, c.nxt, c.nxt_end) + [f"s_lshl_b32 s{S_TMP + 5}, s{S_WAVE}, 13", f"v_lshlrev_b32 v{TT + 3}, 7, v{L}"], per=1)
        post[gs[n]].append(VM(("PFC",), f"buffer_load_dword {DUMMY}, v{TT + 3}, s[{S_C}:{S_C + 3}], s{S_TMP + 5} offen"))
        n += 1
        it = []
        for i in range(MT):
            b = A_ST + i * 16
            it += [NEEDV(("STL", i, 7)), f"v_accvgpr_read_b32 v{TT}, a{b}", f"v_accvgpr_read_b32 v{TT + 1}, a{b + 1}"]
            for q in range(1, 8):
                it += [f"v_accvgpr_read_b32 v{TT + 2}, a{b + 2 * q}", f"v_accvgpr_read_b32 v{TT + 3}, a{b + 2 * q + 1}",
                       f"v_add_f32 v{TT}, v{TT}, v{TT + 2}", f"v_add_f32 v{TT + 1}, v{TT + 1}, v{TT + 3}"]
            it += ln_scalars(TT, TT + 4, V_ST + 2 * i + 1, V_ST + 2 * i, V_XF + 4 * i, S_MASK, L)
            it += [f"v_mul_f32 v{V_ST + 2 * i}, {f32bits(-LOG2E):#x}, v{V_ST + 2 * i}"]
        spread(gs[n] + 6, NG_, it, per=3)
    elif kind == "out":
        t0 = NST - 4
        it = srd_lines(S_R, S_P2, 0, S * D * 2) + srd_lines(S_O, S_WS, WS_CSP, 16 * 2 * F * 4) + [
            f"v_and_b32 v{TT}, 31, v{L}", f"v_lshlrev_b32 v{TT}, 11, v{TT}", f"v_lshrrev_b32 v{TT + 1}, 5, v{L}",
            f"v_lshl_add_u32 v{TT}, v{TT + 1}, 4, v{TT}",
            f"s_lshl_b32 s{S_TMP + 2}, s{S_MT}, 16", f"s_lshl_b32 s{S_TMP + 3}, s{S_CB}, 7", f"s_add_u32 s{S_TMP + 2}, s{S_TMP + 2}, s{S_TMP + 3}",
            f"v_lshrrev_b32 v{TT + 1}, 3, v{L}", f"v_mul_u32_u24 v{TT + 1}, {2 * F * 4}, v{TT + 1}", f"v_and_b32 v{TT + 2}, 7, v{L}",
            f"v_lshl_add_u32 v{TT + 1}, v{TT + 2}, 2, v{TT + 1}",
            f"s_mul_i32 s{S_TMP + 3}, s2, 112", f"s_mul_i32 s{S_TMP + 4}, s{S_WAVE}, 28", f"s_add_u32 s{S_TMP + 3}, s{S_TMP + 3}, s{S_TMP + 4}",
            f"s_add_u32 s{S_TMP + 4}, s{S_TMP + 3}, {8 * 2 * F * 4}"]
        spread((t0 - 2) * NM, t0 * NM, it, per=1)
        it = [VM(("X", b), f"buffer_load_dwordx4 v[{V_X + 4 * b}:{V_X + 4 * b + 3}], v{TT}, s[{S_R}:{S_R + 3}], s{S_TMP + 2} offen offset:{b * 32}") for b in range(4)]
        it += [VM(("CSL", 0), f"buffer_load_dword v{V_CS}, v{TT + 1}, s[{S_O}:{S_O + 3}], s{S_TMP + 3} offen"),
               VM(("CSL", 1), f"buffer_load_dword v{V_CS + 1}, v{TT + 1}, s[{S_O}:{S_O + 3}], s{S_TMP + 4} offen")]
        spread(t0 * NM, NG_, it, per=1)
    elif kind == "down":
        t0 = NST - 3
        it = srd_lines(S_R, S_WS, WS_H, S * D * 2) + [
            f"s_lshl_b32 s{S_TMP + 2}, s{S_MT}, 16", f"s_lshl_b32 s{S_TMP + 3}, s{S_CB}, 12", f"s_add_u32 s{S_TMP + 2}, s{S_TMP + 2}, s{S_TMP + 3}"]
        spread((t0 - 1) * NM, t0 * NM, it, per=1)
        it = [VM(("X", b), f"buffer_load_dwordx4 v[{V_X + 4 * b}:{V_X + 4 * b + 3}], v{V_AO}, s[{S_R}:{S_R + 3}], s{S_TMP + 2} offen offset:{b * 1024}") for b in range(4)]
        spread(t0 * NM, NG_, it, per=1)

    out([NEEDV(("W", 0, i)) for i in range(NDMA)] + [Item("bar")])
    out(first_reads)
    k.stamp(1)
    k.label("pc0")

    def cap(G):
        if PER == 2:
            return 2
        if MT == 1:
            return 1
        return 1 if G % 2 == 0 else 0

    if os.environ.get("QST") and alds:
        for n_, G in enumerate(eval(os.environ["QST"])):
            pre[G].insert(0, T(f"s_memtime s[{60 + 2 * (2 + n_)}:{61 + 2 * (2 + n_)}]  ; STAMP\ns_waitcnt lgkmcnt(0)  ; STAMP"))
    groups = []
    for grp in range(NST // UN):
        lines = []
        for G in range(grp * UN * NM, (grp + 1) * UN * NM):
            lines += sim.emit(pre[G])
            lines.append(mfma[G])
            items = list(post[G])
            n = 0
            while queue and queue[0][0] <= G:
                if queue[0][0] < G and n >= cap(G):
                    break
                items.append(make_vm(queue.pop(0)[2]))
                n += 1
            lines += sim.emit(items)
        groups.append(lines)
    assert not queue
    if os.environ.get("QST") and alds:
        fold(k, groups, S_CNT)
    else:
        if fold(k, groups, S_CNT)[1] < 2:
            k.stamp(2)
            k.stamp(3)
        k.stamp(4)
        k.stamp(5)

    if kind == "qkv":
        out([NEEDD(("AUG", 5)), NEEDD(("RSR", 3))])
        for j in range(NT):
            a, w = vr(V_XF, 4), vr(V_AUG + 4 * j, 4)
            x, y = (a, w) if j >= 4 else (w, a)
            k(f"{M32} {vr(acc(j, 0), 16)}, {x}, {y}, {vr(acc(j, 0), 16)}")
        srd(k, S_O, S_WS, WS_Q, 12 * MB)
        k(f"s_lshl_b32 s{S_TMP + 4}, s{S_MT}, 11")
        k(f"s_mov_b32 s{S_PR}, s{S_CB}")
        k.stamp(6)
        k("s_nop 3")
        for j in range(NT):
            t, h64 = j // 2, j % 2
            k(f"s_lshl_b32 s{S_TMP + 5}, s{S_PR + t}, 18")
            k(f"s_add_u32 s{S_TMP + 5}, s{S_TMP + 5}, s{S_TMP + 4}")
            k(f"s_add_u32 s{S_TMP + 3}, s{S_TMP + 5}, {t * 4 * MB + h64 * 131072}")
            a0 = acc(j, 0)
            for r in range(0, 16, 2):
                aa = f"v[{a0 + r}:{a0 + r + 1}]"
                if t == 0:
                    k(f"v_pk_mul_f32 {aa}, {aa}, v[{V_ST + 2}:{V_ST + 3}] op_sel_hi:[1,0]")
                elif t == 1:
                    k(f"v_pk_mul_f32 {aa}, {aa}, v[{V_ST}:{V_ST + 1}] op_sel_hi:[1,0]")
                else:
                    k(f"v_pk_mul_f32 {aa}, {aa}, v[{V_RSR + r}:{V_RSR + r + 1}]")
            for blk in range(2):
                pb = a0 + blk * 8
                for q in range(4):
                    k(f"v_cvt_pk_bf16_f32 v{pb + q}, v{a0 + blk * 8 + 2 * q}, v{a0 + blk * 8 + 2 * q + 1}")
                k(f"buffer_store_dwordx4 v[{pb}:{pb + 3}], v{V_AO}, s[{S_O}:{S_O + 3}], s{S_TMP + 3} offen offset:{blk * 1024}{SC}")
    elif kind == "out":
        srd(k, S_O, S_WS, WS_H, S * D * 2)
        k(f"s_lshl_b32 s{S_TMP + 3}, s{S_MT}, 16")
        k(f"s_lshl_b32 s{S_TMP + 4}, s{S_CB}, 12")
        k(f"s_add_u32 s{S_TMP + 3}, s{S_TMP + 3}, s{S_TMP + 4}")
        for r in range(4):
            k(f"v_mov_b32 v{V_ST + r}, 0")
        out([NEEDV(("X", 3)), NEEDV(("CSL", 1))])
        k.stamp(6)
        for b in range(4):
            k(f"v_permlane32_swap_b32 v{V_X + 4 * b}, v{V_X + 4 * b + 2}")
            k(f"v_permlane32_swap_b32 v{V_X + 4 * b + 1}, v{V_X + 4 * b + 3}")
    if kind in ("out", "down"):
        if kind == "down":
            srd(k, S_O, S_P2, 0, S * D * 2)
            k(f"v_and_b32 v{TT + 4}, 31, v{L}")
            k(f"v_lshlrev_b32 v{TT + 4}, 11, v{TT + 4}")
            k(f"v_lshrrev_b32 v{TT + 1}, 5, v{L}")
            k(f"v_lshl_add_u32 v{TT + 4}, v{TT + 1}, 4, v{TT + 4}")
            k(f"s_lshl_b32 s{S_TMP + 3}, s{S_MT}, 16")
            k(f"s_lshl_b32 s{S_TMP + 4}, s{S_CB}, 7")
            k(f"s_add_u32 s{S_TMP + 3}, s{S_TMP + 3}, s{S_TMP + 4}")
            out([NEEDV(("X", 3))])
            k.stamp(6)
            k("s_nop 3")
        for j in range(NT):
            a0 = acc(j, 0)
            for blk in range(2):
                pb = V_P + (j * 2 + blk) * 4
                for q in range(4):
                    r0, r1 = a0 + blk * 8 + 2 * q, a0 + blk * 8 + 2 * q + 1
                    xs_ = V_X + (j * 2 + blk) * 4 + q
                    k(f"v_lshlrev_b32 v{TT + 2}, 16, v{xs_}")
                    k(f"v_and_b32 v{TT + 3}, s{S_MASK}, v{xs_}")
                    k(f"v_pk_add_f32 v[{r0}:{r1}], v[{r0}:{r1}], v[{TT + 2}:{TT + 3}]")
                    k(f"v_cvt_pk_bf16_f32 v{pb + q}, v{r0}, v{r1}")
                if kind == "out":
                    k(f"buffer_store_dwordx4 v[{pb}:{pb + 3}], v{V_AO}, s[{S_O}:{S_O + 3}], s{S_TMP + 3} offen offset:{(j * 2 + blk) * 1024}{SC}")
                else:
                    k("s_nop 1")
                    k(f"v_permlane32_swap_b32 v{pb}, v{pb + 2}")
                    k(f"v_permlane32_swap_b32 v{pb + 1}, v{pb + 3}")
                    k(f"buffer_store_dwordx4 v[{pb}:{pb + 3}], v{TT + 4}, s[{S_O}:{S_O + 3}], s{S_TMP + 3} offen offset:{j * 64 + blk * 32}")
    if kind == "out":
        for q in range(NT * 8):
            k(f"v_lshlrev_b32 v{TT}, 16, v{V_P + q}")
            k(f"v_and_b32 v{TT + 1}, s{S_MASK}, v{V_P + q}")
            k(f"v_pk_add_f32 v[{V_ST}:{V_ST + 1}], v[{V_ST}:{V_ST + 1}], v[{TT}:{TT + 1}]")
            k(f"v_pk_fma_f32 v[{V_ST + 2}:{V_ST + 3}], v[{TT}:{TT + 1}], v[{TT}:{TT + 1}], v[{V_ST + 2}:{V_ST + 3}]")
        k(f"v_add_f32 v{V_ST}, v{V_ST}, v{V_ST + 1}")
        k(f"v_add_f32 v{V_ST + 1}, v{V_ST + 2}, v{V_ST + 3}")
        k(f"v_mov_b32 v{TT}, v{V_ST}")
        k(f"v_mov_b32 v{TT + 1}, v{V_ST + 1}")
        srd(k, S_R, S_WS, WS_ST2, 64 * 4096)
        k(f"v_permlane32_swap_b32 v{V_ST}, v{TT}")
        k(f"v_permlane32_swap_b32 v{V_ST + 1}, v{TT + 1}")
        k(f"s_lshl_b32 s{S_TMP + 3}, s{S_MT}, 12")
        k(f"s_lshl_b32 s{S_TMP + 4}, s{S_CB}, 8")
        k(f"s_add_u32 s{S_TMP + 3}, s{S_TMP + 3}, s{S_TMP + 4}")
        k(f"v_add_f32 v{TT}, v{V_ST}, v{TT}")
        k(f"v_add_f32 v{TT + 1}, v{V_ST + 1}, v{TT + 1}")
        k(f"v_lshlrev_b32 v{TT + 4}, 3, v{L}")
        k("s_nop 0")
        k(f"v_mov_b32_dpp v{TT + 2}, v{TT} quad_perm:[1,1,3,3] row_mask:0xf bank_mask:0xf")
        k(f"v_mov_b32_dpp v{TT + 3}, v{TT + 1} quad_perm:[1,1,3,3] row_mask:0xf bank_mask:0xf")
        k("s_mov_b32 exec_lo, 0x55555555")
        k("s_mov_b32 exec_hi, 0")
        k(f"buffer_store_dwordx4 v[{TT}:{TT + 3}], v{TT + 4}, s[{S_R}:{S_R + 3}], s{S_TMP + 3} offen{SC}")
        k("s_mov_b64 exec, -1")
        C = V_CS
        k(f"v_add_f32 v{C}, v{C}, v{C + 1}")
        k("s_nop 1")
        k(f"v_add_f32_dpp v{C}, v{C}, v{C} row_ror:8 row_mask:0xf bank_mask:0xf")
        k(f"s_and_b32 s{S_TMP + 2}, s2, 3")
        k(f"v_mov_b32 v{C + 1}, v{C}")
        k(f"s_mul_i32 s{S_TMP + 2}, s{S_TMP + 2}, 28")
        k(f"s_mul_i32 s{S_TMP + 3}, s{S_WAVE}, 7")
        k(f"v_permlane16_swap_b32 v{C}, v{C + 1}")
        k(f"s_add_u32 s{S_TMP + 2}, s{S_TMP + 2}, s{S_TMP + 3}")
        k("s_nop 0")
        k(f"v_add_f32 v{C}, v{C}, v{C + 1}")
        k(f"v_mov_b32 v{C + 1}, v{C}")
        k("s_nop 1")
        k(f"v_permlane32_swap_b32 v{C}, v{C + 1}")
        k("s_nop 1")
        k(f"v_add_f32 v{C}, v{C}, v{C + 1}")
        for l in cs_split(C, C + 1, C + 4, S_MASK):
            k(l)
        srd(k, S_O, S_WS, WS_AUG, 32 * 3584)
        k(f"v_add_u32 v{TT}, s{S_TMP + 2}, v{L}")
        k(f"v_lshrrev_b32 v{TT + 1}, 4, v{TT}")
        k(f"v_lshlrev_b32 v{TT + 1}, 9, v{TT + 1}")
        k(f"v_and_b32 v{TT}, 15, v{TT}")
        k(f"v_lshl_add_u32 v{TT}, v{TT}, 4, v{TT + 1}")
        k(f"s_bfe_u32 s{S_TMP + 2}, s2, {2 | (5 << 16)}")
        k(f"s_mul_i32 s{S_TMP + 2}, s{S_TMP + 2}, 3584")
        k(f"s_lshr_b32 s{S_TMP + 3}, s2, 7")
        k(f"s_lshl_b32 s{S_TMP + 3}, s{S_TMP + 3}, 8")
        k(f"s_add_u32 s{S_TMP + 2}, s{S_TMP + 2}, s{S_TMP + 3}")
        k("s_mov_b64 exec, 0x7f")
        k(f"buffer_store_dwordx4 v[{C + 4}:{C + 7}], v{TT}, s[{S_O}:{S_O + 3}], s{S_TMP + 2} offen{SC}")
        k("s_mov_b64 exec, -1")
    elif kind == "gu":
        out([NEEDV(("AUG", NT - 1))])
        k("s_nop 1")
        for i in range(MT):
            for j in range(NT):
                k(f"{M32} {vr(acc(j, i), 16)}, a[{A_AUG + 4 * j}:{A_AUG + 4 * j + 3}], {vr(V_XF + 4 * i, 4)}, {vr(acc(j, i), 16)}")
        srd(k, S_O, S_WS, WS_ACT, S * F * 2)
        k.stamp(6)
        for i in range(MT):
            k(f"s_add_u32 s{S_TMP + 3}, s{S_MT}, {i}")
            k(f"s_mul_i32 s{S_TMP + 3}, s{S_TMP + 3}, {F // 16}")
            k(f"s_mul_i32 s{S_TMP + 4}, s{S_CB}, 7")
            k(f"s_add_u32 s{S_TMP + 3}, s{S_TMP + 3}, s{S_TMP + 4}")
            k(f"s_lshl_b32 s{S_TMP + 3}, s{S_TMP + 3}, 10")
            st = f"v[{V_ST + 2 * i}:{V_ST + 2 * i + 1}]"
            for j in range(NT):
                a0 = acc(j, i)
                for r in range(0, 8, 2):
                    k(f"v_pk_mul_f32 v[{a0 + r}:{a0 + r + 1}], v[{a0 + r}:{a0 + r + 1}], {st} op_sel_hi:[1,0]")
                for r in range(8):
                    k(f"v_exp_f32 v{a0 + r}, v{a0 + r}")
                for r in range(0, 8, 2):
                    k(f"v_pk_fma_f32 v[{a0 + r}:{a0 + r + 1}], v[{a0 + r}:{a0 + r + 1}], {st}, {st} op_sel:[0,1,1] op_sel_hi:[1,1,1]")
                for r in range(8):
                    k(f"v_rcp_f32 v{a0 + r}, v{a0 + r}")
                for r in range(0, 8, 2):
                    k(f"v_pk_mul_f32 v[{a0 + 8 + r}:{a0 + 9 + r}], v[{a0 + r}:{a0 + r + 1}], v[{a0 + 8 + r}:{a0 + 9 + r}]")
                for q in range(4):
                    k(f"v_cvt_pk_bf16_f32 v{a0 + q}, v{a0 + 8 + 2 * q}, v{a0 + 9 + 2 * q}")
                off = j * 1024
                k(f"buffer_store_dwordx4 v[{a0}:{a0 + 3}], v{V_AO + (off >> 12)}, s[{S_O}:{S_O + 3}], s{S_TMP + 3} offen offset:{off & 4095}{SC}")
    k.stamp(7)
    k.label("done")
    k("s_endpgm")
    for l in tail_code:
        k(l)
    return k
```

```python
import sys
from gen_common import *
from gen_gemm import gen_gemm
from gen_attn import gen_attn
ks = [
    gen_gemm(cfg(name="qkv_kernel", kind="qkv", MT=1, NT=6, BK=64, K=D, DW=1, RA=2, a_off=WS_XN, kperm=False, code_end="down_kernel_end", nxt="attn_kernel_beg", nxt_end="attn_kernel_end")),
    gen_attn("attn_kernel", "outp_kernel_beg", "down_kernel_end"),
    gen_gemm(cfg(name="outp_kernel", kind="out", MT=1, NT=2, BK=128, K=D, DW=4, RA=2, a_off=WS_O, kperm=True)),
    gen_gemm(cfg(name="gu_kernel", kind="gu", MT=2, NT=7, BK=64, K=D, DW=1, RA=2, a_off=WS_H, kperm=True, nxt="down_kernel_beg", nxt_end="down_kernel_end")),
    gen_gemm(cfg(name="down_kernel", kind="down", MT=1, NT=2, BK=128, K=F, DW=4, RA=2, a_off=WS_ACT, kperm=True)),
]
build(ks, sys.argv[1] if len(sys.argv) > 1 else "sequential_preLN__mha_block__glu_gated_glu__prompt.s")
```

```python
class Item:
    __slots__ = ("kind", "txt", "tag", "pre")

    def __init__(self, kind, txt=None, tag=None, pre=None):
        self.kind, self.txt, self.tag, self.pre = kind, txt, tag, pre


def T(txt):
    return Item("txt", txt)


def VM(tag, txt, pre=None):
    return Item("vm", txt, tag, pre or [])


def DS(tag, txt):
    return Item("ds", txt, tag)


def NEEDV(tag):
    return Item("needv", None, tag)


def NEEDD(tag):
    return Item("needd", None, tag)


def match(tag, pat):
    return tag[:len(pat)] == pat


class Sim:
    def __init__(self):
        self.vm, self.ds = [], []
        self.vm_done, self.ds_done = -1, -1

    def need(self, lst, done, pats, cap):
        idx = -1
        for p in pats:
            found = [i for i, t in enumerate(lst) if match(t, p)]
            assert found, f"needed op {p} not issued"
            idx = max(idx, found[-1])
        if idx > done:
            n = min(len(lst) - 1 - idx, cap)
            return n, len(lst) - 1 - n
        return None, done

    def wait(self, vpats, dpats):
        parts = []
        if vpats:
            n, self.vm_done = self.need(self.vm, self.vm_done, vpats, 63)
            if n is not None:
                parts.append(f"vmcnt({n})")
        if dpats:
            n, self.ds_done = self.need(self.ds, self.ds_done, dpats, 15)
            if n is not None:
                parts.append(f"lgkmcnt({n})")
        return "s_waitcnt " + " ".join(parts) if parts else None

    def emit(self, items):
        out = []
        items = list(items)
        hoisted = None
        nh = 0
        seen_vm = False
        for it in items:
            if it.kind in ("needv", "needd", "bar"):
                break
            if it.kind == "vm":
                if it.pre and "m0" in it.pre[0]:
                    hoisted = it
                    nh = 1 if seen_vm else len(it.pre)
                    out += it.pre[:nh]
                    break
                seen_vm = True
        since = nh - 1
        i = 0
        while i < len(items):
            it = items[i]
            if it.kind in ("needv", "needd"):
                vp, dp = [], []
                while i < len(items) and items[i].kind in ("needv", "needd"):
                    (vp if items[i].kind == "needv" else dp).append(items[i].tag)
                    i += 1
                w = self.wait(vp, dp)
                if w:
                    out.append(w)
                    since += 1
                continue
            if it.kind == "vm":
                if it is hoisted:
                    out += it.pre[nh:]
                    since += len(it.pre) - nh
                elif it.pre:
                    out += it.pre
                    if "m0" in it.pre[0]:
                        since = len(it.pre) - 1
                    else:
                        since += len(it.pre)
                if it.pre and "m0" in it.pre[0] and since < 1:
                    out.append("s_nop 0")
                out.append(it.txt)
                self.vm.append(it.tag)
            elif it.kind == "ds":
                out.append(it.txt)
                self.ds.append(it.tag)
            elif it.kind == "bar":
                out.append("s_barrier")
            else:
                out.append(it.txt)
            since += 1
            i += 1
        return out


def fold(k, groups, cnt_sgpr, label="loop"):
    n = len(groups)
    best = (0, 0)
    i = 0
    while i < n:
        j = i
        while j + 1 < n and groups[j + 1] == groups[i]:
            j += 1
        if j - i + 1 > best[1]:
            best = (i, j - i + 1)
        i = j + 1
    s, ln = best
    for g in range(n):
        if ln >= 2 and g == s:
            k(f"s_mov_b32 s{cnt_sgpr}, {ln}")
            k.stamp(2)
            k.label(label)
            body = list(groups[g])
            body.insert(2, f"s_sub_u32 s{cnt_sgpr}, s{cnt_sgpr}, 1")
            for l in body:
                k(l)
            k(f"s_cmp_lg_u32 s{cnt_sgpr}, 0")
            k(f"s_cbranch_scc1 {k.L(label)}")
            k.stamp(3)
        elif ln >= 2 and s < g < s + ln:
            continue
        else:
            for l in groups[g]:
                k(l)
    return best


def hoist_m0(lines):
    out = []
    i = 0
    while i < len(lines):
        l = lines[i]
        if l.startswith("v_mfma") and i + 1 < len(lines) and lines[i + 1].startswith("s_add_u32 m0"):
            j = i + 1
            sal = []
            while lines[j].startswith(("s_add_u32", "s_sub_u32")) and "\n" not in lines[j]:
                sal.append(lines[j])
                j += 1
            if lines[j] == "s_nop 0":
                j += 1
            out += sal + [l]
            i = j
            continue
        out.append(l)
        i += 1
    return out
```

```python
from gen_common import *
from engine import *
from gen_gemm import cs_split, srd_lines

M32 = "v_mfma_f32_32x32x16_bf16"
M16 = "v_mfma_f32_16x16x32_bf16"


def spin(k, lbl, loads, cmp_lines, cnt):
    return ([f"s_mov_b32 s{cnt}, 0x8000", f"{k.L(lbl)}:", "s_waitcnt vmcnt(0)"] + cmp_lines +
            [f"s_cbranch_scc1 {k.L(lbl + '_ok')}", "s_sleep 2"] + loads +
            [f"s_sub_u32 s{cnt}, s{cnt}, 1", f"s_cmp_lg_u32 s{cnt}, 0", f"s_cbranch_scc1 {k.L(lbl)}", f"{k.L(lbl + '_ok')}:"])


def gen_attn(name, nk=None, nk_end=None):
    RL = 4
    SLOT = 16384
    WOB = 65536
    k = K(name, 256, 576, 163840, 160)
    S0, S1, O, NEGM, P, LL, Q, KF, VF, SEL = 16, 32, 48, 64, 80, 88, 92, 100, 108, 116
    SB = [S0, S1]
    V_LANE, V_RB, V_CUR, V_NXT, T = 1, 3, 4, 5, 8
    S_WS, S_KS, S_VS, S_QS, S_OS = 4, 8, 12, 16, 20
    S_WAVE, S_HEAD, S_QT, S_OFF, S_MASK, S_RSLOT, S_CNT, S_RB, S_T = 24, 25, 26, 27, 28, 29, 30, 31, 32
    S_PF, S_XCD, S_IDX, S_CB = 40, 47, 48, 49
    S_WG, S_WU, S_WD, S_WO, S_X = 52, 54, 56, 58, 50
    k(f"""
    s_load_dwordx2 s[{S_WS}:{S_WS + 1}], s[0:1], {KA_WS}
    s_load_dwordx4 s[{S_WG}:{S_WG + 3}], s[0:1], {KA_WG}
    s_load_dwordx2 s[{S_WD}:{S_WD + 1}], s[0:1], {KA_WD}
    s_load_dwordx2 s[{S_WO}:{S_WO + 1}], s[0:1], {KA_WO}
    s_load_dwordx2 s[{S_X}:{S_X + 1}], s[0:1], {KA_X}
    s_cmp_ge_u32 s2, 256
    s_cbranch_scc1 {k.L('done')}
    v_lshrrev_b32 v{T}, 6, v0
    v_and_b32 v{V_LANE}, 63, v0
    v_readfirstlane_b32 s{S_WAVE}, v{T}
    s_and_b32 s{S_XCD}, s2, 7
    s_lshr_b32 s{S_IDX}, s2, 3
    s_lshl_b32 s{S_HEAD}, s{S_XCD}, 2
    s_lshr_b32 s{S_T + 2}, s{S_IDX}, 3
    s_add_u32 s{S_HEAD}, s{S_HEAD}, s{S_T + 2}
    s_and_b32 s{S_T + 4}, s{S_IDX}, 7
    s_lshl_b32 s{S_QT}, s{S_T + 4}, 3
    s_add_u32 s{S_QT}, s{S_QT}, s{S_WAVE}             ; q tile
    v_lshlrev_b32 v{V_RB}, 4, v{V_LANE}               ; lane*16
    s_lshl_b32 s{S_T + 3}, s{S_HEAD}, 17
    s_lshr_b32 s{S_RB}, s{S_XCD}, 1
    s_lshl_b32 s{S_RB}, s{S_RB}, 2
    s_add_u32 s{S_RB}, s{S_RB}, s{S_T + 2}
    s_and_b32 s{S_CB}, s{S_XCD}, 1
    s_lshl_b32 s{S_CB}, s{S_CB}, 3
    s_add_u32 s{S_CB}, s{S_CB}, s{S_T + 4}
    s_mov_b32 s{S_MASK}, 0xffff0000
    s_waitcnt lgkmcnt(0)
    """)
    k.stamp(0)
    srd(k, S_KS, S_WS, WS_K, 131072, off_sgpr=S_T + 3)
    srd(k, S_VS, S_WS, WS_V, 131072, off_sgpr=S_T + 3)
    k(f"s_cmp_eq_u32 s{S_WAVE}, 8")
    k(f"s_cbranch_scc1 {k.L('loader')}")
    k(f"s_lshl_b32 s{S_OFF}, s{S_WAVE}, 10")
    k(f"s_mov_b32 m0, s{S_OFF}")
    k("s_nop 0")
    k(f"buffer_load_dwordx4 v{V_RB}, s[{S_KS}:{S_KS + 3}], s{S_OFF} offen lds")
    srd(k, S_QS, S_WS, WS_Q, 131072, off_sgpr=S_T + 3)
    k(f"s_lshl_b32 s{S_T + 4}, s{S_QT}, 11")
    k(f"buffer_load_dwordx4 v[{Q}:{Q + 3}], v{V_RB}, s[{S_QS}:{S_QS + 3}], s{S_T + 4} offen")
    k(f"buffer_load_dwordx4 v[{Q + 4}:{Q + 7}], v{V_RB}, s[{S_QS}:{S_QS + 3}], s{S_T + 4} offen offset:1024")
    k(f"s_add_u32 m0, s{S_OFF}, 8192")
    k("s_nop 0")
    k(f"buffer_load_dwordx4 v{V_RB}, s[{S_VS}:{S_VS + 3}], s{S_OFF} offen lds")
    k(f"s_add_u32 m0, s{S_OFF}, {SLOT}")
    k(f"s_add_u32 s{S_T + 5}, s{S_OFF}, 8192")
    k(f"buffer_load_dwordx4 v{V_RB}, s[{S_KS}:{S_KS + 3}], s{S_T + 5} offen lds")
    k(f"s_add_u32 m0, s{S_OFF}, {SLOT + 8192}")
    k("s_nop 0")
    k(f"buffer_load_dwordx4 v{V_RB}, s[{S_VS}:{S_VS + 3}], s{S_T + 5} offen lds")
    k(f"""
    v_lshrrev_b32 v{T}, 4, v{V_LANE}
    v_lshrrev_b32 v{T + 1}, 2, v{V_LANE}
    v_xor_b32 v{T}, v{T}, v{T + 1}
    v_and_b32 v{T}, 1, v{T}
    v_mov_b32 v{T + 1}, 0x3f803f80
    v_cmp_eq_u32 vcc, 0, v{T}
    s_mov_b32 s{S_RSLOT}, 0
    s_mov_b32 s{S_CNT}, 8
    """)
    for d in range(4):
        k(f"v_cndmask_b32 v{SEL + d}, 0, v{T + 1}, vcc")
        k(f"v_mov_b32 v{LL + d}, 0")
    for r in range(16):
        k(f"v_mov_b32 v{O + r}, 0")
    for r in range(4, 8):
        k(f"v_mov_b32 v{P + r}, 0")
    k(f"v_mov_b32 v{V_CUR}, v{V_RB}")
    k(f"s_waitcnt vmcnt(2)")
    k("s_barrier")
    k.stamp(1)
    k(f"ds_read_b128 v[{KF}:{KF + 3}], v{V_CUR}")
    k(f"ds_read_b128 v[{KF + 4}:{KF + 7}], v{V_CUR} offset:1024")
    k("s_waitcnt lgkmcnt(1)")
    k(f"{M32} {vr(S0, 16)}, {vr(KF, 4)}, {vr(Q, 4)}, 0")
    k("s_waitcnt lgkmcnt(0)")
    k(f"{M32} {vr(S0, 16)}, {vr(KF + 4, 4)}, {vr(Q + 4, 4)}, {vr(S0, 16)}")
    k(f"ds_read_b128 v[{KF}:{KF + 3}], v{V_CUR} offset:2048")
    k(f"ds_read_b128 v[{VF + 4}:{VF + 7}], v{V_CUR} offset:{8192 + 1024}")
    k(f"ds_read_b128 v[{KF + 4}:{KF + 7}], v{V_CUR} offset:{2048 + 1024}")
    k(f"ds_read_b128 v[{VF}:{VF + 3}], v{V_CUR} offset:8192")
    k("s_nop 7")
    k(f"v_max3_f32 v{T}, v{S0}, v{S0 + 1}, v{S0 + 2}")
    k(f"v_max3_f32 v{T + 1}, v{S0 + 3}, v{S0 + 4}, v{S0 + 5}")
    for r in range(6, 16, 4):
        k(f"v_max3_f32 v{T}, v{T}, v{S0 + r}, v{S0 + r + 1}")
        if r + 3 < 16:
            k(f"v_max3_f32 v{T + 1}, v{T + 1}, v{S0 + r + 2}, v{S0 + r + 3}")
    k(f"v_max_f32 v{T}, v{T}, v{T + 1}")
    k(f"v_mov_b32 v{T + 1}, v{T}")
    k("s_nop 1")
    k(f"v_permlane32_swap_b32 v{T}, v{T + 1}")
    k("s_nop 1")
    k(f"v_max_f32 v{T}, v{T}, v{T + 1}")
    k(f"v_sub_f32 v{T}, 0, v{T}")
    k(f"v_mov_b32 v{T + 1}, v{T}")
    for r in range(0, 16, 2):
        k(f"v_pk_add_f32 v[{S0 + r}:{S0 + r + 1}], v[{S0 + r}:{S0 + r + 1}], v[{T}:{T + 1}]")
        k(f"v_pk_mov_b32 v[{NEGM + r}:{NEGM + r + 1}], v[{T}:{T + 1}], v[{T}:{T + 1}]")

    def ex(b, r0, n):
        for r in range(r0, r0 + n):
            k(f"v_exp_f32 v{b + r}, v{b + r}")

    def cv(b, q0, n):
        for q in range(q0, q0 + n):
            k(f"v_cvt_pk_bf16_f32 v{P + q}, v{b + 2 * q}, v{b + 2 * q + 1}")

    k.stamp(2)
    k.label("loop")
    for st in range(2):
        cur, nxt = (V_CUR, V_NXT) if st == 0 else (V_NXT, V_CUR)
        for tt in range(4):
            cb, nb = SB[tt % 2], SB[(tt + 1) % 2]
            if tt == 2:
                if st == 0:
                    k("s_waitcnt vmcnt(0)")
                k("s_barrier")

            def kaddr(dt, half):
                t2 = tt + dt
                return (cur, t2 * 2048 + half * 1024) if t2 < 4 else (nxt, (t2 - 4) * 2048 + half * 1024)

            k(f"s_setprio {3 - (tt + 2) % 4}  ; PRIO")
            k("s_waitcnt lgkmcnt(2)")
            k(f"{M32} {vr(nb, 16)}, {vr(KF, 4)}, {vr(Q, 4)}, {vr(NEGM, 16)}")
            a, o = kaddr(2, 0)
            k(f"ds_read_b128 v[{KF}:{KF + 3}], v{a} offset:{o}")
            ex(cb, 0, 4)
            k(f"{M32} {vr(O, 16)}, {vr(VF + 4, 4)}, {vr(P + 4, 4)}, {vr(O, 16)}")
            a, o = kaddr(0, 1)
            k(f"ds_read_b128 v[{VF + 4}:{VF + 7}], v{a} offset:{o + 8192}")
            ex(cb, 4, 3)
            cv(cb, 0, 2)
            k(f"{M16} {vr(LL, 4)}, {vr(SEL, 4)}, {vr(P + 4, 4)}, {vr(LL, 4)}")
            ex(cb, 7, 2)
            k("s_waitcnt lgkmcnt(2)")
            k(f"{M32} {vr(nb, 16)}, {vr(KF + 4, 4)}, {vr(Q + 4, 4)}, {vr(nb, 16)}")
            a, o = kaddr(2, 1)
            k(f"ds_read_b128 v[{KF + 4}:{KF + 7}], v{a} offset:{o}")
            cv(cb, 2, 2)
            if tt == 1:
                k(f"s_add_u32 s{S_RSLOT}, s{S_RSLOT}, {SLOT}")
                k(f"s_and_b32 s{S_RSLOT}, s{S_RSLOT}, {RL * SLOT - 1}")
                k(f"v_add_u32 v{nxt}, s{S_RSLOT}, v{V_RB}")
            ex(cb, 9, 3)
            k(f"{M32} {vr(O, 16)}, {vr(VF, 4)}, {vr(P, 4)}, {vr(O, 16)}")
            a, o = kaddr(1, 0)
            k(f"ds_read_b128 v[{VF}:{VF + 3}], v{a} offset:{o + 8192}")
            ex(cb, 12, 4)
            k(f"{M16} {vr(LL, 4)}, {vr(SEL, 4)}, {vr(P, 4)}, {vr(LL, 4)}")
            if tt == 3 and st == 1:
                k(f"s_sub_u32 s{S_CNT}, s{S_CNT}, 1")
                k(f"s_cmp_lg_u32 s{S_CNT}, 0")
            cv(cb, 4, 4)
    k(f"s_cbranch_scc1 {k.L('loop')}")
    k.stamp(3)
    k("s_waitcnt lgkmcnt(0)")
    k("s_nop 0")
    k(f"{M32} {vr(O, 16)}, {vr(VF + 4, 4)}, {vr(P + 4, 4)}, {vr(O, 16)}")
    k(f"{M16} {vr(LL, 4)}, {vr(SEL, 4)}, {vr(P + 4, 4)}, {vr(LL, 4)}")
    srd(k, S_OS, S_WS, WS_O, S * D * 2)
    k(f"s_lshl_b32 s{S_T}, s{S_QT}, 16")
    k(f"s_lshl_b32 s{S_T + 1}, s{S_HEAD}, 11")
    k(f"s_add_u32 s{S_T}, s{S_T}, s{S_T + 1}")
    k.label("finish")
    k("s_nop 7")
    k(f"v_rcp_f32 v{T}, v{LL}")
    k(f"v_mov_b32 v{T + 1}, 0x5f800000")
    k("s_nop 3")
    for r in range(0, 16, 2):
        k(f"v_pk_mul_f32 v[{S1 + r}:{S1 + r + 1}], v[{O + r}:{O + r + 1}], v[{T}:{T + 1}] op_sel_hi:[1,0]")
    k(f"v_mov_b32 v{T + 2}, v{LL}")
    k(f"v_mov_b32 v{T + 3}, 0")
    for r in range(0, 16, 2):
        k(f"v_pk_fma_f32 v[{T + 2}:{T + 3}], v[{S1 + r}:{S1 + r + 1}], 0, v[{T + 2}:{T + 3}] op_sel_hi:[1,0,1]")
    k(f"v_add_f32 v{T + 2}, v{T + 2}, v{T + 3}")
    for q in range(8):
        k(f"v_cvt_pk_bf16_f32 v{P + q}, v{S1 + 2 * q}, v{S1 + 2 * q + 1}")
    k(f"v_cmp_nlt_f32 vcc, v{T + 2}, v{T + 1}")
    k(f"s_cmp_lg_u32 s{S_CNT}, 0")
    k(f"s_cbranch_scc1 {k.L('store')}")
    k(f"s_cbranch_vccnz {k.L('slow')}")
    k.label("store")
    k(f"buffer_store_dwordx4 v[{P}:{P + 3}], v{V_RB}, s[{S_OS}:{S_OS + 3}], s{S_T} offen sc1")
    k(f"buffer_store_dwordx4 v[{P + 4}:{P + 7}], v{V_RB}, s[{S_OS}:{S_OS + 3}], s{S_T} offen offset:1024 sc1")

    ACC, AFR, WF, V_X, V_CS = 16, 48, 112, 144, 152
    V_WB = 4
    V_A1 = 2
    S_KH, S_MT, S_A, S_R, S_H = 44, 45, 8, 12, 16
    L = V_LANE
    k(f"""
    s_lshr_b32 s{S_KH}, s{S_WAVE}, 2
    s_and_b32 s{S_MT}, s{S_WAVE}, 3
    s_lshl_b32 s{S_T + 2}, s{S_RB}, 2
    s_add_u32 s{S_MT}, s{S_MT}, s{S_T + 2}
    v_bfe_u32 v{T}, v{L}, 2, 2
    v_lshrrev_b32 v{T + 1}, 5, v{L}
    v_lshl_add_u32 v{T + 3}, v{T + 1}, 2, v{T}
    v_lshlrev_b32 v{T + 3}, 7, v{T + 3}
    v_and_b32 v{T + 2}, 3, v{L}
    v_lshl_add_u32 v{T + 3}, v{T + 2}, 3, v{T + 3}
    v_bfe_u32 v{T + 2}, v{L}, 4, 1
    v_lshl_add_u32 v{T + 3}, v{T + 2}, 5, v{T + 3}
    v_bfe_u32 v{T + 2}, v{L}, 3, 1
    v_lshl_add_u32 v{T + 3}, v{T + 2}, 6, v{T + 3}
    s_lshl_b32 s{S_T + 2}, s{S_KH}, 6
    v_xor_b32 v{T + 3}, s{S_T + 2}, v{T + 3}
    s_lshl_b32 s{S_T + 2}, s{S_KH}, 16
    s_add_u32 s{S_T + 2}, s{S_T + 2}, {WOB}
    s_cmp_eq_u32 s{S_KH}, 0
    s_cselect_b32 s{S_T + 3}, {WOB + 32768}, 0
    v_add_u32 v{V_WB}, s{S_T + 2}, v{T + 3}
    v_xor_b32 v{V_WB + 1}, 64, v{V_WB}
    v_add_u32 v{V_WB + 2}, s{S_T + 3}, v{T + 3}
    v_xor_b32 v{V_WB + 3}, 64, v{V_WB + 2}
    s_lshl_b32 s{S_T + 4}, s{S_MT}, 16
    s_lshl_b32 s{S_OFF}, s{S_XCD}, 2
    s_add_u32 s{S_OFF}, s{S_OFF}, s{S_KH}
    s_add_u32 s{S_OFF}, s{S_OFF}, 4
    s_lshl_b32 s{S_OFF}, s{S_OFF}, 11
    s_and_b32 s{S_OFF}, s{S_OFF}, 0xffff
    v_and_b32 v{T}, 31, v{L}
    v_lshlrev_b32 v{T}, 11, v{T}
    v_lshl_add_u32 v{T}, v{T + 1}, 4, v{T}
    s_lshl_b32 s{S_T + 6}, s{S_CB}, 7
    s_add_u32 s{S_T + 6}, s{S_T + 6}, s{S_T + 4}
    s_lshl_b32 s{S_T + 7}, s{S_KH}, 6
    s_add_u32 s{S_T + 6}, s{S_T + 6}, s{S_T + 7}
    """)
    srd(k, S_A, S_WS, WS_O, 65536, off_sgpr=S_T + 4)
    srd(k, S_R, S_X, 0, S * D * 2)
    k("s_waitcnt vmcnt(0)")
    k("s_barrier")
    k.stamp(4)
    sim = Sim()

    def out(items):
        for l in sim.emit(items):
            k(l)

    out([VM(("X", b), f"buffer_load_dwordx4 v[{V_X + 4 * b}:{V_X + 4 * b + 3}], v{T}, s[{S_R}:{S_R + 3}], s{S_T + 6} offen offset:{b * 32}") for b in range(2)])
    k("s_barrier")
    k.stamp(5)

    def a_load(f):
        pre = [f"s_add_u32 s{S_OFF}, s{S_OFF}, 4096", f"s_and_b32 s{S_OFF}, s{S_OFF}, 0xffff"] if f and f % 2 == 0 else []
        b = AFR + (f % 16) * 4
        return VM(("A", f), f"buffer_load_dwordx4 v[{b}:{b + 3}], v{V_RB}, s[{S_A}:{S_A + 3}], s{S_OFF} offen offset:{(f % 2) * 1024} sc1", pre)

    def w_read(q):
        f, j = q // 2, q % 2
        b = WF + (q % 8) * 4
        return [DS(("W", q, h), f"ds_read_b64_tr_b16 v[{b + 2 * h}:{b + 2 * h + 1}], v{V_WB + (f // 16) * 2 + j} offset:{(f % 16) * 2048 + h * 1024}") for h in range(2)]

    out([a_load(f) for f in range(8)])
    it = []
    for q in range(8):
        it += w_read(q)
    out(it)
    out([a_load(f) for f in range(8, 16)])
    for q in range(64):
        f, j = q // 2, q % 2
        nd = [NEEDV(("A", f)), NEEDD(("W", q)), NEEDD(("W", q + 1))] if j == 0 else []
        out(nd)
        acc = vr(ACC + 16 * j, 16)
        k(f"{M32} {acc}, {vr(WF + (q % 8) * 4, 4)}, {vr(AFR + (f % 16) * 4, 4)}, {'0' if f == 0 else acc}")
        it = w_read(q + 8) if q + 8 < 64 else []
        if j == 1 and f + 16 < 28:
            it.append(a_load(f + 16))
        if q == 33:
            it.append(Item("bar"))
            it += [a_load(f2) for f2 in range(28, 32)]
        out(it)
        if q == 33:
            k.stamp(6)
    k.stamp(7)
    k(f"s_lshl_b32 s{S_T}, s{S_WAVE}, 12")
    k(f"s_add_u32 s{S_T}, s{S_T}, 32768")
    k(f"v_add_u32 v{T + 5}, s{S_T}, v{V_RB}")
    k(f"v_xor_b32 v{T + 6}, 16384, v{T + 5}")
    for b in range(2):
        k(f"v_permlane32_swap_b32 v{V_X + 4 * b}, v{V_X + 4 * b + 2}")
        k(f"v_permlane32_swap_b32 v{V_X + 4 * b + 1}, v{V_X + 4 * b + 3}")
    srd(k, S_R, S_WS, WS_H, S * D * 2)
    for q in range(4):
        k(f"ds_write_b128 v{T + 5}, v[{ACC + 16 + 4 * q}:{ACC + 19 + 4 * q}] offset:{q * 1024}")
    XU = AFR
    for q in range(8):
        k(f"v_lshlrev_b32 v{XU}, 16, v{V_X + q}")
        k(f"v_and_b32 v{XU + 1}, s{S_MASK}, v{V_X + q}")
        k(f"v_pk_add_f32 v[{ACC + 2 * q}:{ACC + 2 * q + 1}], v[{ACC + 2 * q}:{ACC + 2 * q + 1}], v[{XU}:{XU + 1}]")
    k("s_waitcnt lgkmcnt(0)")
    k("s_barrier")
    PT = AFR + 16
    for q in range(4):
        k(f"ds_read_b128 v[{PT + 4 * q}:{PT + 3 + 4 * q}], v{T + 6} offset:{q * 1024}")
    k(f"s_lshl_b32 s{S_T + 5}, s{S_CB}, 12")
    k(f"s_add_u32 s{S_T + 5}, s{S_T + 5}, s{S_T + 4}")
    k(f"s_lshl_b32 s{S_T + 6}, s{S_KH}, 11")
    k(f"s_add_u32 s{S_T + 5}, s{S_T + 5}, s{S_T + 6}")
    ST = AFR + 4
    for r in range(4):
        k(f"v_mov_b32 v{ST + r}, 0")
    PK = AFR + 8
    for blk in range(2):
        k(f"s_waitcnt lgkmcnt({2 - 2 * blk})")
        for q in range(4 * blk, 4 * blk + 4):
            k(f"v_pk_add_f32 v[{ACC + 2 * q}:{ACC + 2 * q + 1}], v[{ACC + 2 * q}:{ACC + 2 * q + 1}], v[{PT + 2 * q}:{PT + 2 * q + 1}]")
            k(f"v_cvt_pk_bf16_f32 v{PK + q}, v{ACC + 2 * q}, v{ACC + 2 * q + 1}")
        k(f"buffer_store_dwordx4 v[{PK + 4 * blk}:{PK + 4 * blk + 3}], v{V_RB}, s[{S_R}:{S_R + 3}], s{S_T + 5} offen offset:{blk * 1024} sc1")
    for q in range(8):
        k(f"v_lshlrev_b32 v{XU}, 16, v{PK + q}")
        k(f"v_and_b32 v{XU + 1}, s{S_MASK}, v{PK + q}")
        k(f"v_pk_add_f32 v[{ST}:{ST + 1}], v[{ST}:{ST + 1}], v[{XU}:{XU + 1}]")
        k(f"v_pk_fma_f32 v[{ST + 2}:{ST + 3}], v[{XU}:{XU + 1}], v[{XU}:{XU + 1}], v[{ST + 2}:{ST + 3}]")
    k(f"v_add_f32 v{ST}, v{ST}, v{ST + 1}")
    k(f"v_add_f32 v{ST + 1}, v{ST + 2}, v{ST + 3}")
    k(f"s_lshl_b32 s{S_T}, s{S_WAVE}, 9")
    k(f"v_lshlrev_b32 v{T + 5}, 3, v{L}")
    k(f"v_add_u32 v{T + 6}, s{S_T}, v{T + 5}")
    k(f"ds_write_b64 v{T + 6}, v[{ST}:{ST + 1}]")
    k("s_waitcnt lgkmcnt(0)")
    k("s_barrier")
    k(f"s_cmp_ge_u32 s{S_WAVE}, 4")
    k(f"s_cbranch_scc1 {k.L('fin')}")
    k(f"v_and_b32 v{T + 5}, 15, v{L}")
    k(f"v_lshlrev_b32 v{T + 5}, 4, v{T + 5}")
    k(f"v_add_u32 v{T + 6}, s{S_T}, v{T + 5}")
    for n, off in enumerate((0, 256, 2048, 2304)):
        k(f"ds_read_b128 v[{PT + 4 * n}:{PT + 3 + 4 * n}], v{T + 6} offset:{off}")
    srd(k, S_A, S_WS, WS_ST2, 64 * 4096)
    k(f"s_lshl_b32 s{S_T + 3}, s{S_MT}, 12")
    k(f"s_lshl_b32 s{S_T + 4}, s{S_CB}, 8")
    k(f"s_add_u32 s{S_T + 3}, s{S_T + 3}, s{S_T + 4}")
    k("s_waitcnt lgkmcnt(0)")
    for n in (1, 2, 3):
        for h in (0, 2):
            k(f"v_pk_add_f32 v[{PT + h}:{PT + h + 1}], v[{PT + h}:{PT + h + 1}], v[{PT + 4 * n + h}:{PT + 4 * n + h + 1}]")
    k("s_mov_b64 exec, 0xffff")
    k(f"buffer_store_dwordx4 v[{PT}:{PT + 3}], v{T + 5}, s[{S_A}:{S_A + 3}], s{S_T + 3} offen sc1")
    k("s_mov_b64 exec, -1")
    k.label("fin")
    k.label("done")
    k("s_endpgm")

    k.label("slow")
    MX = T + 4
    for r in range(16):
        k(f"v_mov_b32 v{O + r}, 0")
    for r in range(4):
        k(f"v_mov_b32 v{LL + r}, 0")
    k(f"v_mov_b32 v{MX}, 0xff7fffff")
    k(f"s_mov_b32 s{S_OFF}, 0")
    k.label("slow1")
    k(f"buffer_load_dwordx4 v[{KF}:{KF + 3}], v{V_RB}, s[{S_KS}:{S_KS + 3}], s{S_OFF} offen")
    k(f"buffer_load_dwordx4 v[{KF + 4}:{KF + 7}], v{V_RB}, s[{S_KS}:{S_KS + 3}], s{S_OFF} offen offset:1024")
    k(f"buffer_load_dwordx4 v[{VF}:{VF + 3}], v{V_RB}, s[{S_VS}:{S_VS + 3}], s{S_OFF} offen")
    k(f"buffer_load_dwordx4 v[{VF + 4}:{VF + 7}], v{V_RB}, s[{S_VS}:{S_VS + 3}], s{S_OFF} offen offset:1024")
    k("s_waitcnt vmcnt(0)")
    k(f"{M32} {vr(S0, 16)}, {vr(KF, 4)}, {vr(Q, 4)}, 0")
    k(f"{M32} {vr(S0, 16)}, {vr(KF + 4, 4)}, {vr(Q + 4, 4)}, {vr(S0, 16)}")
    k("s_nop 7")
    k("s_nop 7")
    k(f"v_max3_f32 v{T}, v{S0}, v{S0 + 1}, v{MX}")
    for r in range(2, 16, 2):
        k(f"v_max3_f32 v{T}, v{T}, v{S0 + r}, v{S0 + r + 1}")
    k(f"v_mov_b32 v{T + 1}, v{T}")
    k("s_nop 1")
    k(f"v_permlane32_swap_b32 v{T}, v{T + 1}")
    k("s_nop 1")
    k(f"v_max_f32 v{T}, v{T}, v{T + 1}")
    k(f"v_sub_f32 v{T + 1}, v{MX}, v{T}")
    k(f"v_exp_f32 v{T + 1}, v{T + 1}")
    k(f"v_mov_b32 v{MX}, v{T}")
    for r in range(16):
        k(f"v_mul_f32 v{O + r}, v{O + r}, v{T + 1}")
    for r in range(4):
        k(f"v_mul_f32 v{LL + r}, v{LL + r}, v{T + 1}")
    for r in range(16):
        k(f"v_sub_f32 v{S0 + r}, v{S0 + r}, v{T}")
    ex(S0, 0, 16)
    k("s_nop 0")
    cv(S0, 0, 8)
    k("s_nop 1")
    k(f"{M32} {vr(O, 16)}, {vr(VF, 4)}, {vr(P, 4)}, {vr(O, 16)}")
    k(f"{M32} {vr(O, 16)}, {vr(VF + 4, 4)}, {vr(P + 4, 4)}, {vr(O, 16)}")
    k(f"{M16} {vr(LL, 4)}, {vr(SEL, 4)}, {vr(P, 4)}, {vr(LL, 4)}")
    k(f"{M16} {vr(LL, 4)}, {vr(SEL, 4)}, {vr(P + 4, 4)}, {vr(LL, 4)}")
    k(f"s_add_u32 s{S_OFF}, s{S_OFF}, 2048")
    k(f"s_cmp_lt_u32 s{S_OFF}, 131072")
    k("s_nop 7")
    k(f"s_cbranch_scc1 {k.L('slow1')}")
    k(f"s_mov_b32 s{S_CNT}, 1")
    k(f"s_branch {k.L('finish')}")

    k.label("loader")
    k("s_setprio 3")
    ls = Sim()

    def lo(items):
        for l in ls.emit(items):
            k(l)

    PFB, CSA, SEL2, V_GU, V_WD, V_CSA = 16, 80, 84, 4, 5, 6
    S_O1, S_O2, S_CSO, S_WOO, S_RP, S_CS = 44, 45, 46, 41, 16, 20
    S_W2 = 60

    def kv(s):
        it = []
        for which, sr in ((0, S_KS), (1, S_VS)):
            for g in range(2):
                for i in range(4):
                    pre = [f"s_mov_b32 m0, {(s % RL) * SLOT + which * 8192 + g * 4096}", f"s_mov_b32 s{S_OFF}, {s * 8192 + g * 4096}"] if i == 0 else []
                    it.append(VM(("KV", s, which, g, i), f"buffer_load_dwordx4 v{V_RB}, s[{sr}:{sr + 3}], s{S_OFF} offen offset:{i * 1024} lds", pre))
        return it

    lo([Item("bar")])
    lo(kv(2))
    k(f"""
    v_lshrrev_b32 v{T}, 3, v{V_LANE}
    v_and_b32 v{T + 1}, 7, v{V_LANE}
    v_mul_u32_u24 v{V_GU}, {F * 2}, v{T}
    v_lshl_add_u32 v{V_GU}, v{T + 1}, 4, v{V_GU}
    v_bfe_u32 v{T + 2}, v{V_LANE}, 4, 1
    v_lshlrev_b32 v{T + 2}, 2, v{T + 2}
    v_xor_b32 v{T + 2}, v{T + 1}, v{T + 2}
    v_lshlrev_b32 v{V_WD}, 11, v{T}
    v_lshl_add_u32 v{V_WD}, v{T + 2}, 4, v{V_WD}
    v_lshlrev_b32 v{V_CSA}, 5, v{T + 1}
    v_and_b32 v{T + 2}, 16, v{V_LANE}
    v_add_u32 v{V_CSA}, v{V_CSA}, v{T + 2}
    v_and_b32 v{T + 2}, 15, v{V_LANE}
    v_lshrrev_b32 v{T + 3}, 1, v{T + 2}
    v_and_b32 v{T + 2}, 1, v{T + 2}
    v_lshlrev_b32 v{T + 2}, 4, v{T + 2}
    v_mov_b32 v{T + 4}, 0x3f80
    v_lshlrev_b32 v{T + 2}, v{T + 2}, v{T + 4}
    """)
    for d in range(4):
        k(f"v_cmp_eq_u32 vcc, {d}, v{T + 3}")
        k("s_nop 1")
        k(f"v_cndmask_b32 v{SEL2 + d}, 0, v{T + 2}, vcc")
    srd(k, S_W2, S_WO, 0, D * D * 2)
    srd(k, S_CS, S_WS, WS_CSP, 16 * 2 * F * 4)
    k(f"s_lshl_b32 s{S_WOO}, s{S_CB}, 7")
    k(f"s_add_u32 s{S_T}, s{S_XCD}, 1")
    k(f"s_lshl_b32 s{S_T}, s{S_T}, 18")
    k(f"s_add_u32 s{S_WOO}, s{S_WOO}, s{S_T}")
    k(f"s_lshr_b32 s{S_T + 8 - 1}, s{S_XCD}, 2")
    k(f"s_lshl_b32 s{S_T + 7}, s{S_T + 7}, 5")
    k(f"s_add_u32 s{S_T + 7}, s{S_T + 7}, s{S_IDX}")
    k(f"s_mul_i32 s{S_T + 7}, s{S_T + 7}, 7")

    S_PS = 64
    S_CSOS = 68
    S_FL = 72

    def wo(rows8, ldsbase):
        it = []
        for n, r8 in enumerate(rows8):
            kh, i, sub = r8 >> 6, (r8 >> 2) & 15, r8 & 3
            pre = [f"s_mov_b32 m0, {ldsbase + n * 1024}", f"s_add_u32 s{S_O1}, s{S_WOO}, {(2 * i + kh) * 65536 + sub * 16384}",
                   f"s_and_b32 s{S_O1}, s{S_O1}, {D * D * 2 - 1}"]
            it.append(VM(("WO", r8), f"buffer_load_dwordx4 v{V_WD}, s[{S_W2}:{S_W2 + 3}], s{S_O1} offen lds", pre))
        return it

    def gu_loads(i):
        buf = PFB + 32 * (i % 2)
        t = S_T
        it = [T_(f"""s_add_u32 s{t}, s{S_T + 7}, {i}
s_lshr_b32 s{t + 1}, s{t}, 4
s_and_b32 s{t}, s{t}, 15
s_cmp_ge_u32 s{t + 1}, 14
s_cselect_b32 s{t + 2}, 14, 0
s_cselect_b32 s{t + 3}, {F}, 0
s_cselect_b32 s{S_PS}, s{S_WU}, s{S_WG}
s_cselect_b32 s{S_PS + 1}, s{S_WU + 1}, s{S_WG + 1}
s_mov_b32 s{S_PS + 2}, {D * F * 2}
s_mov_b32 s{S_PS + 3}, 0x20000
s_sub_u32 s{t + 1}, s{t + 1}, s{t + 2}
s_lshl_b32 s{t + 1}, s{t + 1}, 6
s_and_b32 s{t + 2}, s{S_XCD}, 3
s_mul_i32 s{t + 2}, s{t + 2}, 896
s_add_u32 s{t + 1}, s{t + 1}, s{t + 2}
s_mul_i32 s{S_O2}, s{t}, {64 * F * 2}
s_lshl_b32 s{t + 2}, s{t + 1}, 1
s_add_u32 s{S_O2}, s{S_O2}, s{t + 2}
s_mul_i32 s{S_CSOS + i % 2}, s{t}, {2 * F * 4}
s_add_u32 s{t + 1}, s{t + 1}, s{t + 3}
s_lshl_b32 s{t + 1}, s{t + 1}, 2
s_add_u32 s{S_CSOS + i % 2}, s{S_CSOS + i % 2}, s{t + 1}""")]
        for u in range(8):
            it.append(VM(("PF", i, u), f"buffer_load_dwordx4 v[{buf + 4 * u}:{buf + 4 * u + 3}], v{V_GU}, s[{S_PS}:{S_PS + 3}], s{S_O2} offen",
                         [f"s_add_u32 s{S_O2}, s{S_O2}, {8 * F * 2}"] if u else []))
        return it

    def gu_sum(i):
        buf = PFB + 32 * (i % 2)
        it = [NEEDV(("PF", i, 7))]
        for u in range(8):
            it.append(T_(f"{M16} {vr(CSA, 4)}, {vr(SEL2, 4)}, {vr(buf + 4 * u, 4)}, {'0' if u == 0 else vr(CSA, 4)}"))
        it.append(T_("s_nop 7"))
        for d in range(4):
            it.append(T_(f"v_add_f32_dpp v{T + 4 + d}, v{CSA + d}, v{CSA + d} row_ror:8 row_mask:0xf bank_mask:0xf"))
        it.append(VM(("CSS", i), f"s_mov_b32 exec_lo, 0x00ff00ff\ns_mov_b32 exec_hi, 0\nbuffer_store_dwordx4 v[{T + 4}:{T + 7}], v{V_CSA}, s[{S_CS}:{S_CS + 3}], s{S_CSOS + i % 2} offen sc1\ns_mov_b64 exec, -1"))
        return it

    def wd_loads(i):
        j = i - 7
        buf = PFB + 32 * (i % 2)
        it = []
        if j == 0:
            it.append(T_("\n".join(srd_lines(S_PS, S_WD, 0, F * D * 2) + [
                f"s_lshr_b32 s{S_T}, s2, 4", f"s_mul_i32 s{S_O2}, s{S_T}, {28 * 16384}", f"s_and_b32 s{S_T + 1}, s2, 15",
                f"s_lshl_b32 s{S_T + 2}, s{S_T + 1}, 7", f"s_add_u32 s{S_O2}, s{S_O2}, s{S_T + 2}",
                f"s_mul_i32 s{S_CSO}, s{S_T + 1}, {F * 128}", f"s_mul_i32 s{S_T}, s{S_T}, {28 * 1024}", f"s_add_u32 s{S_CSO}, s{S_CSO}, s{S_T}"]
                + srd_lines(S_RP, S_WS, WS_WD2, 16 * F * 128))))
        for u in range(7):
            it.append(VM(("PF", i, u), f"buffer_load_dwordx4 v[{buf + 4 * u}:{buf + 4 * u + 3}], v{V_WD}, s[{S_PS}:{S_PS + 3}], s{S_O2} offen",
                         [f"s_add_u32 s{S_O2}, s{S_O2}, 16384"] if (u or j) else []))
        return it

    def wd_stores(i):
        j = i - 7
        buf = PFB + 32 * (i % 2)
        it = [NEEDV(("PF", i, 6))]
        for u in range(7):
            it.append(VM(("RPS", i, u), f"buffer_store_dwordx4 v[{buf + 4 * u}:{buf + 4 * u + 3}], v{V_RB}, s[{S_RP}:{S_RP + 3}], s{S_CSO} offen sc1",
                         [f"s_add_u32 s{S_CSO}, s{S_CSO}, 1024"] if (u or j) else []))
        return it

    for s in range(16):
        lo(([NEEDV(("KV", s + 1))] if 1 < s + 1 < 16 else []) + [Item("bar")])
        it = []
        if s + 3 < 16:
            it += kv(s + 3)
        if 0 <= s - 2 <= 6:
            it += gu_sum(s - 2)
        elif 7 <= s - 2 <= 10:
            it += wd_stores(s - 2)
        if s <= 6:
            it += gu_loads(s)
        elif s <= 10:
            it += wd_loads(s)
        if s < 12:
            it += wo(range(8 * s, 8 * s + 8), WOB + s * 8192)
        if s == 13:
            it += wo(range(96, 112), 0)
        if s == 14:
            it += wo(range(112, 128), 16384)
        if s == 10:
            it += [T_(l) for l in srd_lines(S_FL, S_WS, WS_FLG2, 3 * 256 * 128)]
            it += [T_(f"v_mov_b32 v{T + 1}, 1"), T_(f"v_mov_b32 v{T + 2}, 0"), T_(f"s_lshl_b32 s{S_O1}, s2, 7"), T_(f"s_add_u32 s{S_O1}, s{S_O1}, 65536"),
                   NEEDV(("CSS", 6)),
                   VM(("CSF",), f"s_mov_b64 exec, 1\nbuffer_store_dword v{T + 1}, v{T + 2}, s[{S_FL}:{S_FL + 3}], s{S_O1} offen sc1\ns_mov_b64 exec, -1")]
        C = 88
        if s == 11:
            it += [T_(l) for l in srd_lines(S_PS, S_WS, WS_XCH, 8 * MB) + [f"v_mov_b32 v{96 + r}, -1" for r in range(4)] + [f"s_lshl_b32 s{S_CSOS}, s2, 15"]]
        if 11 <= s <= 14:
            for n in range(8):
                it.append(VM(("POI", s, n), f"buffer_store_dwordx4 v[96:99], v{V_RB}, s[{S_PS}:{S_PS + 3}], s{S_CSOS} offen offset:{(n % 4) * 1024} sc1",
                             [f"s_add_u32 s{S_CSOS}, s{S_CSOS}, 4096"] if n % 4 == 0 and (n or s > 11) else []))
        if s == 12:
            csp = f"buffer_load_dword v{C}, v{T + 3}, s[{S_FL}:{S_FL + 3}], s{S_O2} offen sc1"
            pre_cs = [f"v_and_b32 v{T + 3}, 31, v{V_LANE}", f"v_lshlrev_b32 v{T + 3}, 10, v{T + 3}", f"v_lshrrev_b32 v{T + 4}, 5, v{V_LANE}",
                      f"v_lshl_add_u32 v{T + 3}, v{T + 4}, 9, v{T + 3}", f"s_bfe_u32 s{S_O2}, s2, {5 | (2 << 16)}", f"s_lshl_b32 s{S_O2}, s{S_O2}, 7",
                      f"s_add_u32 s{S_O2}, s{S_O2}, 65536"]
            it += [T_(l) for l in pre_cs] + [VM(("CSP",), csp)]
        if s == 13:
            for l in spin(k, "spincs", [csp], [f"v_cmp_eq_u32 vcc, 1, v{C}", "s_nop 1", "s_cmp_eq_u64 vcc, -1"], S_T + 6):
                k(l)
            i2 = [T_(l) for l in [f"v_lshrrev_b32 v{T + 4}, 5, v{V_LANE}", f"v_mul_u32_u24 v{T + 4}, {8 * 2 * F * 4}, v{T + 4}", f"v_and_b32 v{T + 5}, 31, v{V_LANE}",
                                  f"v_lshl_add_u32 v{T + 4}, v{T + 5}, 2, v{T + 4}", f"s_mul_i32 s{S_O2}, s2, 112"]]
            for n in range(8):
                i2.append(VM(("CSL", n), f"buffer_load_dword v{C + n}, v{T + 4}, s[{S_CS}:{S_CS + 3}], s{S_O2} offen sc1",
                             [f"s_add_u32 s{S_O2}, s{S_O2}, {2 * F * 4}"] if n else []))
            it = i2 + it
        if s == 14:
            it += [T_(l) for l in [f"s_and_b32 s{S_T + 2}, s2, 3", f"s_mul_i32 s{S_T + 2}, s{S_T + 2}, 28", f"v_add_u32 v{T + 5}, s{S_T + 2}, v{T + 5}",
                      f"v_lshrrev_b32 v{T + 6}, 4, v{T + 5}", f"v_lshlrev_b32 v{T + 6}, 9, v{T + 6}", f"v_and_b32 v{T + 5}, 15, v{T + 5}",
                      f"v_lshl_add_u32 v{T + 5}, v{T + 5}, 4, v{T + 6}", f"s_bfe_u32 s{S_T + 2}, s2, {2 | (5 << 16)}", f"s_mul_i32 s{S_T + 2}, s{S_T + 2}, 3584",
                      f"s_lshr_b32 s{S_T + 3}, s2, 7", f"s_lshl_b32 s{S_T + 3}, s{S_T + 3}, 8", f"s_add_u32 s{S_T + 2}, s{S_T + 2}, s{S_T + 3}"] +
                     srd_lines(S_RP, S_WS, WS_AUG, 32 * 3584)] + [NEEDV(("CSL", 7))]
            it += [T_(l) for l in [f"v_add_f32 v{C}, v{C}, v{C + n}" for n in range(1, 8)] +
                     [f"v_mov_b32 v{C + 1}, v{C}", "s_nop 1", f"v_permlane32_swap_b32 v{C}, v{C + 1}", "s_nop 1", f"v_add_f32 v{C}, v{C}, v{C + 1}"] +
                     cs_split(C, C + 1, C + 4, S_MASK)]
            it.append(VM(("AUGS",), f"s_mov_b64 exec, 0x0fffffff\nbuffer_store_dwordx4 v[{C + 4}:{C + 7}], v{T + 5}, s[{S_RP}:{S_RP + 3}], s{S_T + 2} offen sc1\ns_mov_b64 exec, -1"))
        if s == 11 and nk:
            it += [T_(l) for l in code_srd(92, nk, nk_end)] + [T_(f"v_lshlrev_b32 v{T}, 7, v{V_LANE}")]
            for n in range(5):
                it.append(VM(("PFC", n), f"buffer_load_dword v{T + 7}, v{T}, s[92:95], s{S_O1} offen", [f"s_mov_b32 s{S_O1}, {n * 8192}"]))
        lo(it)
    FP = PFB + 8
    k(f"v_bfe_u32 v{T + 3}, v{V_LANE}, 2, 3")
    k(f"v_lshlrev_b32 v{T}, 7, v{T + 3}")
    k(f"v_and_b32 v{T + 4}, 3, v{V_LANE}")
    k(f"v_lshl_add_u32 v{T}, v{T + 4}, 2, v{T}")
    k(f"v_cmp_eq_u32 s[{S_CSOS}:{S_CSOS + 1}], s{S_XCD}, v{T + 3}")
    k(f"s_lshr_b32 s{S_O2}, s{S_RB}, 1")
    k(f"s_lshl_b32 s{S_O2}, s{S_O2}, 10")
    k(f"s_and_b32 s{S_O1}, s{S_IDX}, 7")
    k(f"s_lshl_b32 s{S_O1}, s{S_O1}, 3")
    k(f"s_add_u32 s{S_O1}, s{S_O1}, s{S_XCD}")
    k(f"s_lshl_b32 s{S_O1}, s{S_O1}, 7")
    k(f"s_lshr_b32 s{S_T}, s{S_IDX}, 3")
    k(f"s_lshl_b32 s{S_T}, s{S_T}, 2")
    k(f"s_add_u32 s{S_O1}, s{S_O1}, s{S_T}")
    S_PS = S_FL
    pl = [f"buffer_load_dword v{FP}, v{T}, s[{S_FL}:{S_FL + 3}], s{S_O2} offen sc1"]
    red = [f"v_cmp_eq_u32 vcc, 1, v{FP}", "s_nop 1"]
    k(f"s_mov_b32 s{S_T + 6}, 2")
    k.label("early")
    for l in pl + ["s_waitcnt vmcnt(0)"] + red + [f"s_or_b64 vcc, vcc, s[{S_CSOS}:{S_CSOS + 1}]", "s_cmp_eq_u64 vcc, -1", f"s_cbranch_scc1 {k.L('early_ok')}",
                                                  f"s_sub_u32 s{S_T + 6}, s{S_T + 6}, 1", f"s_cmp_lg_u32 s{S_T + 6}, 0", f"s_cbranch_scc1 {k.L('early')}"]:
        k(l)
    k.label("early_ok")
    k("s_barrier")
    k("s_mov_b64 exec, 1")
    k(f"buffer_store_dword v{T + 1}, v{T + 2}, s[{S_PS}:{S_PS + 3}], s{S_O1} offen sc1")
    k("s_mov_b64 exec, -1")
    k(f"s_cmp_lg_u32 s{S_T + 6}, 0")
    k(f"s_cbranch_scc1 {k.L('spin_ok')}")
    for l in pl + spin(k, "spin", pl, red + [f"s_or_b64 vcc, vcc, s[{S_CSOS}:{S_CSOS + 1}]", "s_cmp_eq_u64 vcc, -1"], S_T + 6):
        k(l)
    k("s_barrier")
    for l in pl + spin(k, "spin2", pl, red + ["s_cmp_eq_u64 vcc, -1"], S_T + 6):
        k(l)
    k("s_barrier")
    k("s_endpgm")
    return k


def T_(txt):
    return Item("txt", txt)
```

```python
import sys, math

S, D, H, DH, F = 2048, 1024, 32, 32, 3584
MB = 1 << 20
WS_XN = 0
WS_Q = 4 * MB
WS_K = 8 * MB
WS_V = 12 * MB
WS_O = 16 * MB
WS_H = 20 * MB
WS_HN = 24 * MB
WS_ACT = 28 * MB
WS_CSP = 44 * MB
WS_AUG = 45 * MB
WS_ST2 = 46 * MB
WS_ST1 = 47 * MB
WS_CS1 = 48 * MB
WS_WD2 = 50 * MB
WS_FLG = 49 * MB
WS_FLG2 = WS_FLG + 32768
WS_FLG3 = WS_FLG + 65536
WS_FLG4 = WS_FLG + 98304
WS_XCH = 72 * MB
KA_X, KA_WQKV, KA_WO, KA_BX, KA_WG, KA_WU, KA_WD, KA_OUT, KA_DBG, KA_WS = [8 * i for i in range(10)]

LOG2E = 1.4426950408889634
import os
STAMP = bool(os.environ.get('STAMP'))
STAMP_IDX = {}


def f32bits(x):
    import struct
    return struct.unpack("<I", struct.pack("<f", x))[0]


class K:
    def __init__(self, name, grid, block, lds, nvgpr, nagpr=0, nsgpr=96):
        self.name, self.grid, self.block, self.lds = name, grid, block, lds
        self.nvgpr, self.nagpr, self.nsgpr = nvgpr, nagpr, nsgpr
        self.lines = []

    def __call__(self, s):
        for l in s.split("\n"):
            l = l.strip()
            if l:
                self.lines.append(l if l.endswith(":") else "    " + l)

    def label(self, l):
        self.lines.append(f"{self.name}_{l}:")

    def L(self, l):
        return f"{self.name}_{l}"

    def text(self):
        lines = list(self.lines)
        if STAMP:
            idx = self.idx
            pre = ["    s_memtime s[80:81]", "    s_memrealtime s[82:83]", "    s_load_dwordx2 s[88:89], s[0:1], 72", "    s_mov_b32 s90, s2",
                   "    v_lshrrev_b32 v1, 6, v0", "    s_nop 1", "    v_readfirstlane_b32 s91, v1", "    s_waitcnt lgkmcnt(0)"]
            post = ["    s_waitcnt vmcnt(0) lgkmcnt(0)", "    s_memtime s[84:85]", "    s_memrealtime s[86:87]", "    s_waitcnt lgkmcnt(0)",
                    "    s_lshl_b32 s90, s90, 3", "    s_add_u32 s90, s90, s91", "    s_lshl_b32 s90, s90, 6",
                    f"    s_add_u32 s90, s90, {64 * MB + idx * 262144}", "    s_add_u32 s88, s88, s90", "    s_addc_u32 s89, s89, 0",
                    "    v_mov_b32 v0, 0"]
            for i in range(8):
                post.append(f"    v_mov_b32 v1, s{80 + i}")
                post.append(f"    global_store_dword v0, v1, s[88:89] offset:{4 * i}")
            for i in range(8):
                post.append(f"    v_mov_b32 v1, s{60 + 2 * i}")
                post.append(f"    global_store_dword v0, v1, s[88:89] offset:{32 + 4 * i}")
            post.append("    s_waitcnt vmcnt(0)")
            j = lines.index(f"{self.name}_done:")
            lines = pre + lines[:j] + post + lines[j:]
        lines = [l for l in lines if STAMP or "STAMP" not in l]
        return (f".globl {self.name}\n.p2align 8\n.type {self.name},@function\n{self.name}:\n{self.name}_beg:\n"
                + "\n".join(lines) + f"\n{self.name}_end:\n")

    def stamp(self, i):
        self.lines.append(f"    s_memtime s[{60 + 2 * i}:{61 + 2 * i}]  ; STAMP")
        self.lines.append(f"    s_waitcnt lgkmcnt(0)  ; STAMP")

    def desc(self):
        acc = (self.nvgpr + 3) // 4 * 4
        nfv = acc + self.nagpr if self.nagpr else self.nvgpr
        return f""".p2align 6
.amdhsa_kernel {self.name}
  .amdhsa_next_free_vgpr {nfv}
  .amdhsa_next_free_sgpr {self.nsgpr}
  .amdhsa_accum_offset {acc}
  .amdhsa_group_segment_fixed_size 0
  .amdhsa_kernarg_size 80
  .amdhsa_user_sgpr_count 2
  .amdhsa_user_sgpr_kernarg_segment_ptr 1
  .amdhsa_system_sgpr_workgroup_id_x 1
.end_amdhsa_kernel
"""

    def launch(self):
        return f"; @launch kernel={self.name} grid=({self.grid},1,1) block=({self.block},1,1) lds={self.lds}"


_pcn = [0]


def code_srd(dst, start, end, back=False):
    _pcn[0] += 1
    l = f".Lpc{_pcn[0]}"
    if back:
        return [f"s_getpc_b64 s[{dst}:{dst + 1}]\n{l}:\ns_sub_u32 s{dst}, s{dst}, {l}-{start}\ns_subb_u32 s{dst + 1}, s{dst + 1}, 0",
                f"s_mov_b32 s{dst + 2}, {end}-{start}", f"s_mov_b32 s{dst + 3}, 0x20000"]
    return [f"s_getpc_b64 s[{dst}:{dst + 1}]\n{l}:\ns_add_u32 s{dst}, s{dst}, {start}-{l}\ns_addc_u32 s{dst + 1}, s{dst + 1}, 0",
            f"s_mov_b32 s{dst + 2}, {end}-{start}", f"s_mov_b32 s{dst + 3}, 0x20000"]


def vr(b, n=1, f="v"):
    return f"{f}{b}" if n == 1 else f"{f}[{b}:{b + n - 1}]"


def srd(k, dst, ptr, off, nbytes, off_sgpr=None):
    if off:
        k(f"s_add_u32 s{dst}, s{ptr}, {off}")
        k(f"s_addc_u32 s{dst + 1}, s{ptr + 1}, 0")
    else:
        k(f"s_mov_b32 s{dst}, s{ptr}")
        k(f"s_mov_b32 s{dst + 1}, s{ptr + 1}")
    if off_sgpr is not None:
        k(f"s_add_u32 s{dst}, s{dst}, s{off_sgpr}")
        k(f"s_addc_u32 s{dst + 1}, s{dst + 1}, 0")
    k(f"s_mov_b32 s{dst + 2}, {nbytes}")
    k(f"s_mov_b32 s{dst + 3}, 0x20000")


def gen_ln(name, first):
    k = K(name, 256, 256, 256, 80)
    k(f"""
    s_load_dwordx2 s[4:5], s[0:1], {KA_X}
    s_load_dwordx2 s[6:7], s[0:1], {KA_WS}
    s_cmp_ge_u32 s2, 256
    s_cbranch_scc1 {k.L('done')}
    v_and_b32 v1, 7, v0               ; r8
    v_lshrrev_b32 v2, 6, v0           ; wave
    v_bfe_u32 v3, v0, 3, 3            ; lane>>3
    v_lshl_add_u32 v3, v2, 5, v3
    s_lshr_b32 s8, s2, 2              ; mt
    s_lshl_b32 s8, s8, 16
    s_and_b32 s9, s2, 3
    s_lshl_b32 s9, s9, 7              ; (b&3)*8*16
    s_add_u32 s8, s8, s9
    v_lshrrev_b32 v4, 1, v3
    v_lshlrev_b32 v4, 10, v4
    v_and_b32 v5, 1, v3
    v_lshl_add_u32 v4, v5, 9, v4
    v_lshl_add_u32 v4, v1, 4, v4
    v_add_u32 v4, s8, v4
    s_mov_b32 s20, 4096
    s_mov_b32 s21, 8192
    s_mov_b32 s22, 12288
    s_waitcnt lgkmcnt(0)
    """)
    if first:
        srd(k, 12, 4, 0, S * D * 2)
        srd(k, 16, 6, WS_XN, S * D * 2)
        k(f"""
        s_lshl_b32 s10, s2, 14            ; b*8 rows*2048
        v_lshlrev_b32 v5, 11, v1
        v_lshl_add_u32 v5, v3, 4, v5
        v_add_u32 v5, s10, v5
        """)
        for i in range(4):
            k(f"buffer_load_dwordx4 v[{8 + 4 * i}:{11 + 4 * i}], v5, s[12:15], 0 offen offset:{128 * i}")
    else:
        srd(k, 12, 6, WS_H, S * D * 2)
        srd(k, 16, 6, WS_HN, S * D * 2)
        for i in range(4):
            so = ["0", "s20", "s21", "s22"][i]
            k(f"buffer_load_dwordx4 v[{8 + 4 * i}:{11 + 4 * i}], v4, s[12:15], {so} offen")
    k("v_mov_b32 v6, 0")
    k("v_mov_b32 v7, 0")
    k("s_mov_b32 s23, 0xffff0000")
    for i in range(4):
        k(f"s_waitcnt vmcnt({3 - i})")
        for d in range(4):
            src = 8 + 4 * i + d
            lo, hi = 32 + 8 * i + 2 * d, 33 + 8 * i + 2 * d
            k(f"v_lshlrev_b32 v{lo}, 16, v{src}")
            k(f"v_and_b32 v{hi}, s23, v{src}")
            k(f"v_add_f32 v6, v6, v{lo}")
            k(f"v_fmac_f32 v7, v{lo}, v{lo}")
            k(f"v_add_f32 v6, v6, v{hi}")
            k(f"v_fmac_f32 v7, v{hi}, v{hi}")
    k("""
    s_nop 1
    v_add_f32_dpp v6, v6, v6 row_ror:8 row_mask:0xf bank_mask:0xf
    v_add_f32_dpp v7, v7, v7 row_ror:8 row_mask:0xf bank_mask:0xf
    s_nop 1
    v_mov_b32 v24, v6
    v_mov_b32 v25, v7
    s_nop 1
    v_permlane16_swap_b32 v6, v24
    v_permlane16_swap_b32 v7, v25
    s_nop 1
    v_add_f32 v6, v6, v24
    v_add_f32 v7, v7, v25
    s_nop 0
    v_mov_b32 v24, v6
    v_mov_b32 v25, v7
    s_nop 1
    v_permlane32_swap_b32 v6, v24
    v_permlane32_swap_b32 v7, v25
    s_nop 1
    v_add_f32 v6, v6, v24
    v_add_f32 v7, v7, v25
    v_lshlrev_b32 v26, 5, v1
    v_lshl_add_u32 v27, v2, 3, v26
    ds_write_b64 v27, v[6:7]
    s_waitcnt lgkmcnt(0)
    s_barrier
    ds_read_b128 v[64:67], v26
    ds_read_b128 v[68:71], v26 offset:16
    s_waitcnt lgkmcnt(0)
    v_add_f32 v6, v64, v66
    v_add_f32 v7, v65, v67
    v_add_f32 v24, v68, v70
    v_add_f32 v25, v69, v71
    v_add_f32 v6, v6, v24
    v_add_f32 v7, v7, v25
    v_mul_f32 v6, 0x3a800000, v6       ; mean
    v_mul_f32 v7, 0x3a800000, v7       ; E[x^2]
    v_fma_f32 v7, -v6, v6, v7          ; var
    v_max_f32 v7, 0, v7
    v_cvt_pk_bf16_f32 v24, v6, v7
    v_lshlrev_b32 v6, 16, v24          ; mean_bf
    v_and_b32 v7, s23, v24             ; var_bf
    v_add_f32 v7, 0x3727c5ac, v7       ; + 1e-5
    v_cvt_pk_bf16_f32 v24, v7, v7
    v_and_b32 v7, s23, v24
    v_sqrt_f32 v7, v7
    s_nop 0
    v_cvt_pk_bf16_f32 v24, v7, v7
    v_and_b32 v7, s23, v24
    v_rcp_f32 v7, v7
    s_nop 0
    """)
    for i in range(4):
        for d in range(4):
            lo, hi = 32 + 8 * i + 2 * d, 33 + 8 * i + 2 * d
            dst = 8 + 4 * i + d
            k(f"v_sub_f32 v{lo}, v{lo}, v6")
            k(f"v_sub_f32 v{hi}, v{hi}, v6")
            k(f"v_cvt_pk_bf16_f32 v24, v{lo}, v{hi}")
            k(f"v_lshlrev_b32 v{lo}, 16, v24")
            k(f"v_and_b32 v{hi}, s23, v24")
            k(f"v_mul_f32 v{lo}, v{lo}, v7")
            k(f"v_mul_f32 v{hi}, v{hi}, v7")
            k(f"v_cvt_pk_bf16_f32 v{dst}, v{lo}, v{hi}")
        so = ["0", "s20", "s21", "s22"][i]
        k(f"buffer_store_dwordx4 v[{8 + 4 * i}:{11 + 4 * i}], v4, s[16:19], {so} offen")
    k.label("done")
    k("s_endpgm")
    return k


def cfg(**kw):
    c = GemmCfg()
    c.__dict__.update(kw)
    return c


def build(kernels, path):
    hdr = open("sequential_preLN__mha_block__glu_gated_glu__prompt.s.ref").read().split("\n")
    hdr = [l for l in hdr if l.startswith(";") and "@launch" not in l and "Override" not in l and "grid=ceil" not in l]
    out = "\n".join(hdr) + "\n" + "\n".join(k.launch() for k in kernels) + "\n"
    out += '.amdgcn_target "amdgcn-amd-amdhsa--gfx950"\n.text\n'
    seen = []
    for k in kernels:
        if k.name not in seen:
            k.idx = len(seen)
            out += k.text()
            seen.append(k.name)
    out += '.section .rodata,"a"\n'
    seen = []
    for k in kernels:
        if k.name not in seen:
            out += k.desc()
            seen.append(k.name)
    open(path, "w").write(out)


class GemmCfg:
    pass
```

```python
from gen_common import *
from engine import *

M32 = "v_mfma_f32_32x32x16_bf16"
SC = " sc1"


def rnd_hi(dst, src, smask):
    return [f"v_cvt_pk_bf16_f32 v{dst}, v{src}, v{src}", f"v_and_b32 v{dst}, s{smask}, v{dst}"]


def ln_scalars(b, t, sig, rs, x, smask, L):
    o = [f"v_mov_b32 v{t}, v{b}", f"v_mov_b32 v{t + 1}, v{b + 1}", "s_nop 1",
         f"v_permlane32_swap_b32 v{b}, v{t}", f"v_permlane32_swap_b32 v{b + 1}, v{t + 1}", "s_nop 1",
         f"v_add_f32 v{b}, v{b}, v{t}", f"v_add_f32 v{b + 1}, v{b + 1}, v{t + 1}",
         f"v_mul_f32 v{b}, 0xba800000, v{b}",
         f"v_mul_f32 v{b + 1}, 0x3a800000, v{b + 1}",
         f"v_fma_f32 v{b + 1}, -v{b}, v{b}, v{b + 1}",
         f"v_max_f32 v{b + 1}, 0, v{b + 1}"]
    o += rnd_hi(b + 1, b + 1, smask)
    o += [f"v_add_f32 v{b + 1}, 0x3727c5ac, v{b + 1}"]
    o += rnd_hi(b + 1, b + 1, smask)
    o += [f"v_sqrt_f32 v{b + 1}, v{b + 1}", "s_nop 0"]
    o += rnd_hi(sig, b + 1, smask)
    o += [f"v_rcp_f32 v{rs}, v{sig}"]
    o += rnd_hi(t, b, smask)
    o += [f"v_sub_f32 v{t + 1}, v{b}, v{t}"]
    o += rnd_hi(t + 2, t + 1, smask)
    o += [f"v_sub_f32 v{t + 3}, v{t + 1}, v{t + 2}",
          f"v_cvt_pk_bf16_f32 v{x}, v{t}, v{t + 2}",
          f"v_cvt_pk_bf16_f32 v{x + 2}, v{t}, v{t + 3}",
          f"v_cmp_gt_u32 vcc, 32, v{L}",
          f"v_mov_b32 v{x + 3}, 0", "s_nop 0",
          f"v_cndmask_b32 v{x}, 0, v{x}, vcc",
          f"v_cndmask_b32 v{x + 2}, 0, v{x + 2}, vcc",
          f"v_mov_b32 v{x + 1}, v{x}"]
    return o


def cs_split(c, t, f, smask):
    o = rnd_hi(t, c, smask)
    o += [f"v_sub_f32 v{t + 1}, v{c}, v{t}"]
    o += rnd_hi(t + 2, t + 1, smask)
    o += [f"v_sub_f32 v{t + 1}, v{t + 1}, v{t + 2}",
          f"v_cvt_pk_bf16_f32 v{f}, v{t}, v{t}",
          f"v_cvt_pk_bf16_f32 v{f + 1}, v{t + 2}, v{t + 2}",
          f"v_cvt_pk_bf16_f32 v{f + 2}, v{t + 1}, v{t}",
          f"v_mov_b32 v{f + 3}, 0"]
    return o


def srd_lines(dst, ptr, off, nbytes):
    o = []
    if off:
        o += [f"s_add_u32 s{dst}, s{ptr}, {off}\ns_addc_u32 s{dst + 1}, s{ptr + 1}, 0"]
    else:
        o += [f"s_mov_b32 s{dst}, s{ptr}", f"s_mov_b32 s{dst + 1}, s{ptr + 1}"]
    return o + [f"s_mov_b32 s{dst + 2}, {nbytes}", f"s_mov_b32 s{dst + 3}, 0x20000"]


def gen_gemm(c):
    MT, NT, BK, KK = c.MT, c.NT, c.BK, c.K
    SS = BK // 16
    NST = KK // BK
    RA = c.RA
    PW, RL, UN = 3, 4, 4
    DW = c.DW
    NF = NT * DW
    kind = c.kind
    alds = kind == "qkv"
    assert NST % UN == 0 and UN % RA == 0
    if kind == "gu":
        UPOFF = BK * 224 + 128
        SLOT = UPOFF + BK * 224
        NDW = (BK * 14 * 2) // 64 // 4
        RSTR, NH, MAXOFF = 224, 1, BK * 224
    else:
        NP = NT // 2
        SLOT = NP * BK * 128
        NDW = NP * (BK // 8) // 4
        RSTR, NH, MAXOFF = 128, 2, SLOT
    lds = SLOT * RL
    ABASE, ASLOT = lds, 128 * BK * 2
    NDA = 4 if alds else 0
    if alds:
        lds += ASLOT * RL
    NDMA = NDW + NDA
    SPG = max(1, min(RL, (65536 - MAXOFF) // SLOT + 1))
    while RL % SPG:
        SPG -= 1
    NG = RL // SPG
    nA = SS * MT
    big = MT * NT * 16 > 128
    ACC = 0
    nacc = MT * NT * 16
    v = nacc
    V_RB = v; v += NH * NG
    V_AO = v; v += 2
    V_WO = v; v += NDMA
    V_LANE = v; v += 1
    V_AR = v; v += 4 if alds else 0
    v = (v + 3) // 4 * 4
    V_ST = v; v += 4
    V_T = v; v += 8
    if big:
        V_XF = v; v += 8
        AF, af = 0, "a"
        WF, wf = RA * nA * 4, "a"
        A_ST = WF + NF * 4
        A_AUG = A_ST + 32
        nagpr = A_AUG + NT * 4 + 1
        DUMMY = f"a{A_AUG + NT * 4}"
        nv = v
    else:
        AF, af = v, "v"; v += 8 if alds else RA * nA * 4
        WF, wf = v, "v"; v += NF * 4
        V_X = v; v += 16
        V_P = v; v += 0 if alds else NT * 8
        V_CS = v; v += 16
        if alds:
            V_AUG = v; v += 24
            V_XF = v; v += 4
            V_RSR = v; v += 16
        DUMMY = f"v{v}"; v += 1
        V_PC = v; v += 1
        nagpr = 0
        nv = v
    assert nv <= 256, nv
    k = K(c.name, 256, 320 if alds else 256, lds, nv, nagpr)

    def areg(t, ss, i):
        if alds:
            return vr(AF + (ss % 2) * 4, 4, af)
        return vr(AF + (((t % RA) * SS + ss) * MT + i) * 4, 4, af)

    def wreg(slot, half=None):
        b = WF + slot * 4
        return vr(b, 4, wf) if half is None else vr(b + 2 * half, 2, wf)

    def acc(j, i):
        return ACC + (j * MT + i) * 16

    S_A = [4, 8]
    S_W = 12
    S_AOFF, S_WOFF, S_WBASE, S_MASK, S_CNT, S_WAVE, S_RB, S_CB, S_MT, S_ABASE = 16, 17, 18, 19, 20, 21, 22, 23, 24, 25
    S_P0, S_P1, S_WS, S_P2 = 26, 28, 30, 32
    S_O, S_R, S_TMP, S_EX, S_D, S_C = 36, 40, 44, 52, 56, 92
    S_PR = 52
    S_KI, S_K0 = 34, 35

    wptr = {"qkv": KA_WQKV, "out": KA_WO, "gu": KA_WG, "down": KA_WD}[kind]
    NW = {"qkv": 3 * D, "out": D, "gu": F, "down": D}[kind]
    if kind != "down":
        k(f"s_load_dwordx2 s[{S_P0}:{S_P0 + 1}], s[0:1], {wptr}")
    k(f"s_load_dwordx2 s[{S_WS}:{S_WS + 1}], s[0:1], {KA_WS}")
    if kind == "gu":
        k(f"s_load_dwordx2 s[{S_P1}:{S_P1 + 1}], s[0:1], {KA_WU}")
    if kind == "qkv":
        k(f"s_load_dwordx2 s[{S_P1}:{S_P1 + 1}], s[0:1], {KA_DBG}")
    if kind != "gu":
        k(f"s_load_dwordx2 s[{S_P2}:{S_P2 + 1}], s[0:1], {KA_OUT if kind == 'down' else KA_X}")
    L, TT = V_LANE, V_T
    k(f"""
    s_cmp_ge_u32 s2, 256
    s_cbranch_scc1 {k.L('done')}
    v_lshrrev_b32 v{TT}, 6, v0
    v_and_b32 v{L}, 63, v0
    v_readfirstlane_b32 s{S_WAVE}, v{TT}
    s_and_b32 s{S_TMP}, s2, 7
    s_lshr_b32 s{S_TMP + 1}, s2, 3
    """)
    if kind == "qkv":
        xs, xm, isx, im, rsh, csh = 2, 3, 2, 3, 3, 2
    elif kind == "gu":
        xs, xm, isx, im, rsh, csh = 2, 3, 3, 7, 2, 3
    else:
        xs, xm, isx, im, rsh, csh = 1, 1, 3, 7, 2, 3
    k(f"""
    s_lshr_b32 s{S_RB}, s{S_TMP}, {xs}
    s_lshl_b32 s{S_RB}, s{S_RB}, {rsh}
    s_lshr_b32 s{S_TMP + 2}, s{S_TMP + 1}, {isx}
    s_add_u32 s{S_RB}, s{S_RB}, s{S_TMP + 2}
    s_and_b32 s{S_CB}, s{S_TMP}, {xm}
    s_lshl_b32 s{S_CB}, s{S_CB}, {csh}
    s_and_b32 s{S_TMP + 2}, s{S_TMP + 1}, {im}
    s_add_u32 s{S_CB}, s{S_CB}, s{S_TMP + 2}
    s_lshl_b32 s{S_MT}, s{S_RB}, 2
    s_add_u32 s{S_MT}, s{S_MT}, s{S_WAVE}
    """)
    if alds:
        k(f"s_cmp_eq_u32 s{S_WAVE}, 4")
        k(f"s_cbranch_scc1 {k.L('helper')}")
    if MT > 1:
        k(f"s_mul_i32 s{S_MT}, s{S_MT}, {MT}")
    k(f"v_lshlrev_b32 v{V_AO}, 4, v{L}")
    k(f"v_add_u32 v{V_AO + 1}, 4096, v{V_AO}")
    if kind == "gu":
        k(f"s_lshr_b32 s{S_TMP + 3}, s{S_WAVE}, 1")
        k(f"s_mul_i32 s{S_TMP + 2}, s{S_TMP + 3}, {(BK // 2) * NW * 2}")
        k(f"s_mul_i32 s{S_TMP + 4}, s{S_CB}, 224")
        k(f"s_add_u32 s{S_TMP + 2}, s{S_TMP + 2}, s{S_TMP + 4}")
        k(f"v_add_u32 v{TT + 2}, s{S_TMP + 2}, v{V_AO}")
        k(f"v_mul_u32_u24 v{TT}, 4682, v{L}")
        for i in range(NDW):
            k(f"v_add_u32 v{TT + 1}, {64 * i * 4682}, v{TT}")
            k(f"v_lshrrev_b32 v{TT + 1}, 16, v{TT + 1}")
            k(f"v_mul_u32_u24 v{TT + 1}, {NW * 2 - 224}, v{TT + 1}")
            k(f"v_add3_u32 v{V_WO + i}, v{TT + 1}, v{TT + 2}, 0" if i == 0 else f"v_add_u32 v{TT + 2}, 1024, v{TT + 2}\nv_add_u32 v{V_WO + i}, v{TT + 1}, v{TT + 2}")
        k(f"s_and_b32 s{S_TMP + 2}, s{S_WAVE}, 1")
        k(f"s_mul_i32 s{S_TMP + 2}, s{S_TMP + 2}, {UPOFF}")
        k(f"s_mul_i32 s{S_TMP + 3}, s{S_TMP + 3}, {(BK // 2) * 224}")
        k(f"s_add_u32 s{S_WBASE}, s{S_TMP + 2}, s{S_TMP + 3}")
        dma_lds = [1024 * i for i in range(NDW)]
    elif kind == "down":
        RPW = BK // 8 // 4
        k(f"s_mul_i32 s{S_WBASE}, s{S_WAVE}, {RPW * 1024}")
        k(f"v_add_u32 v{V_WO}, s{S_WBASE}, v{V_AO}")
        for i in range(1, NDW):
            k(f"v_add_u32 v{V_WO + i}, {i * 1024}, v{V_WO}")
        k(f"s_mul_i32 s{S_TMP + 6}, s{S_CB}, {F * 128}")
        dma_lds = [1024 * i for i in range(NDW)]
    else:
        RPW = BK // 8 // 4
        k(f"v_lshrrev_b32 v{TT}, 3, v{L}")
        k(f"v_and_b32 v{TT + 1}, 7, v{L}")
        k(f"v_bfe_u32 v{TT + 2}, v{L}, 4, 1")
        k(f"v_lshlrev_b32 v{TT + 2}, 2, v{TT + 2}")
        k(f"v_xor_b32 v{TT + 2}, v{TT + 1}, v{TT + 2}")
        k(f"v_mul_u32_u24 v{TT + 3}, {NW * 2}, v{TT}")
        k(f"v_lshl_add_u32 v{TT + 3}, v{TT + 2}, 4, v{TT + 3}")
        k(f"s_mul_i32 s{S_TMP + 2}, s{S_WAVE}, {RPW * 8 * NW * 2}")
        k(f"s_lshl_b32 s{S_TMP + 3}, s{S_CB}, 7")
        k(f"s_add_u32 s{S_TMP + 2}, s{S_TMP + 2}, s{S_TMP + 3}")
        k(f"v_add_u32 v{V_WO}, s{S_TMP + 2}, v{TT + 3}")
        for i in range(1, NDW):
            t, r = i // RPW, i % RPW
            if r == 0:
                k(f"s_add_u32 s{S_PR + t}, s{S_CB}, {5 * t}")
                k(f"s_and_b32 s{S_PR + t}, s{S_PR + t}, 15")
                k(f"s_sub_u32 s{S_TMP + 3}, s{S_PR + t}, s{S_CB}")
                k(f"s_lshl_b32 s{S_TMP + 3}, s{S_TMP + 3}, 7")
                k(f"s_add_u32 s{S_TMP + 3}, s{S_TMP + 3}, {t * D * 2}")
                k(f"v_add_u32 v{V_WO + i}, s{S_TMP + 3}, v{V_WO}")
            else:
                k(f"v_add_u32 v{V_WO + i}, {r * 8 * NW * 2}, v{V_WO + t * RPW}")
        k(f"s_mul_i32 s{S_WBASE}, s{S_WAVE}, {RPW * 1024}")
        dma_lds = [(i // RPW) * BK * 128 + (i % RPW) * 1024 for i in range(NDW)]
        if alds:
            k(f"v_lshrrev_b32 v{TT + 2}, 4, v{L}")
            k(f"v_xor_b32 v{TT + 2}, v{TT + 1}, v{TT + 2}")
            k(f"v_lshlrev_b32 v{TT + 3}, 11, v{TT}")
            k(f"v_lshl_add_u32 v{V_WO + NDW}, v{TT + 2}, 4, v{TT + 3}")
            k(f"v_xor_b32 v{TT + 2}, 64, v{V_WO + NDW}")
            k(f"v_add_u32 v{V_WO + NDW + 1}, 16384, v{TT + 2}")
            k(f"v_add_u32 v{V_WO + NDW + 2}, 32768, v{V_WO + NDW}")
            k(f"v_add_u32 v{V_WO + NDW + 3}, 49152, v{TT + 2}")
            k(f"s_lshl_b32 s{S_ABASE}, s{S_WAVE}, 12")
            k(f"s_add_u32 s{S_ABASE}, s{S_ABASE}, {ABASE}")
    for i in range(MT):
        if i:
            k(f"s_add_u32 s{S_TMP + 4 + i}, s{S_TMP + 4}, {KK * 64}")
        else:
            k(f"s_mul_i32 s{S_TMP + 4}, s{S_MT}, {KK * 64}")
    k("s_waitcnt lgkmcnt(0)")
    k.stamp(0)
    if kind == "gu":
        k(f"s_bitcmp1_b32 s{S_WAVE}, 0")
        k(f"s_cselect_b32 s{S_W}, s{S_P1}, s{S_P0}")
        k(f"s_cselect_b32 s{S_W + 1}, s{S_P1 + 1}, s{S_P0 + 1}")
        k(f"s_mov_b32 s{S_W + 2}, {KK * NW * 2}")
        k(f"s_mov_b32 s{S_W + 3}, 0x20000")
    elif kind == "down":
        srd(k, S_W, S_WS, WS_WD2, F * 128, off_sgpr=S_TMP + 6)
    else:
        srd(k, S_W, S_P0, 0, KK * NW * 2)
    for i in range(MT):
        if alds:
            srd(k, S_A[0], S_P2, 0, 65536, off_sgpr=S_TMP + 4)
        else:
            srd(k, S_A[i], S_WS, c.a_off, KK * 64, off_sgpr=S_TMP + 4 + i)

    PER = NT * MT
    NM = SS * PER
    NG_ = NST * NM
    pre = [[] for _ in range(NG_)]
    post = [[] for _ in range(NG_)]
    mfma = [None] * NG_
    HS, S2 = (4, 8) if c.kperm else (8, 4)
    ASTEP = BK * 2 if alds else BK * 64
    WSTEP = BK * 128 if kind == "down" else BK * NW * 2
    cur = {"A": 0, "W": 0}

    def step(kindc, b):
        if alds:
            if cur["W"] == b:
                return []
            assert b == cur["W"] + 1
            cur["W"] = b
            first = f"s_mov_b32 s{S_KI}, 0" if b == 1 else f"s_add_u32 s{S_KI}, s{S_KI}, 1"
            return [first + f"\ns_cmp_eq_u32 s{S_KI}, s{S_K0}\ns_addc_u32 s{S_KI}, s{S_KI}, 0\ns_lshl_b32 s{S_AOFF}, s{S_KI}, 7\ns_mul_i32 s{S_WOFF}, s{S_KI}, {WSTEP}"]
        reg, st = (S_AOFF, ASTEP) if kindc == "A" else (S_WOFF, WSTEP)
        if cur[kindc] == b:
            return []
        d = b - cur[kindc]
        cur[kindc] = b
        return [f"s_add_u32 s{reg}, s{reg}, {d * st}"]

    def make_vm(op):
        if op[0] == "W":
            _, b, i = op
            if i < NDW:
                return VM(op, f"buffer_load_dwordx4 v{V_WO + i}, s[{S_W}:{S_W + 3}], s{S_WOFF} offen lds",
                          [f"s_add_u32 m0, s{S_WBASE}, {(b % RL) * SLOT + dma_lds[i]}"] + step("W", b))
            return VM(op, f"buffer_load_dwordx4 v{V_WO + i}, s[{S_A[0]}:{S_A[0] + 3}], s{S_AOFF} offen lds",
                      [f"s_add_u32 m0, s{S_ABASE}, {(b % RL) * ASLOT + (i - NDW) * 1024}"] + step("A", b))
        _, b, ss, i = op
        off = ss * 1024
        return VM(op, f"buffer_load_dwordx4 {areg(b, ss, i)}, v{V_AO + (off >> 12)}, s[{S_A[i]}:{S_A[i] + 3}], s{S_AOFF} offen offset:{off & 4095}",
                  step("A", b))

    def tr_read(fslot, t, ss, j, half):
        slot = t % RL
        if kind == "gu":
            off, h = (ss * 16 + S2 * half) * RSTR + j * 32, 0
        else:
            off, h = (j // 2) * BK * 128 + (ss * 16 + S2 * half) * RSTR, j % 2
        off += (slot % SPG) * SLOT
        assert off < 65536
        return f"ds_read_b64_tr_b16 {wreg(fslot, half)}, v{V_RB + (slot // SPG) * NH + h} offset:{off}"

    def a_read(t, ss):
        return f"ds_read_b128 {areg(t, ss, 0)}, v{V_AR + ss} offset:{(t % RL) * ASLOT}"

    frags = [(t, ss, j) for t in range(NST) for ss in range(SS) for j in range(NT)]
    first_reads = []
    bar_at = {}
    for q, (t, ss, j) in enumerate(frags):
        G0 = q * MT
        rd = [DS(("W", q, h), tr_read(q % NF, t, ss, j, h)) for h in range(2)]
        if q < NF:
            first_reads += rd
        else:
            Gr = (q - NF) * MT + MT - 1
            post[Gr] += rd
            if Gr // NM < t:
                bar_at[t] = min(bar_at.get(t, 1 << 30), Gr)
        if MT == 1 and NF >= 6:
            if q % 2 == 0:
                pre[G0] += [NEEDD(("W", q)), NEEDD(("W", q + 1))]
        else:
            pre[G0].append(NEEDD(("W", q)))
        for i in range(MT):
            a, w = areg(t, ss, i), wreg(q % NF)
            x, y = (a, w) if (kind == "qkv" and j >= 4) else (w, a)
            cin = "0" if (t == 0 and ss == 0) else vr(acc(j, i), 16)
            mfma[G0 + i] = f"{M32} {vr(acc(j, i), 16)}, {x}, {y}, {cin}"
            if j == 0:
                pre[G0 + i].append(NEEDD(("A", t, ss)) if alds else NEEDV(("A", t, ss, i)))
        if alds and j == 0:
            rd = DS(("A", t, ss), a_read(t, ss))
            if q == 0:
                first_reads.insert(0, rd)
            else:
                post[G0 - PER + 1].append(rd)
    if MT > 1:
        bar_at = {t: g - (MT - 1) for t, g in bar_at.items()}
    for t, g in bar_at.items():
        pre[g] = [NEEDV(("W", t, i)) for i in range(NDMA)] + pre[g] + [Item("bar")]
    bar_gap = bar_at[1]

    wpos = []
    for i in range(NDMA):
        p = bar_gap + int((i + 0.3) * NM / NDMA)
        while (MT > 1 and p % MT == MT - 1) or (not alds and p % PER == PER - 1):
            p += 1
        wpos.append(p)
    assert wpos[-1] < bar_gap + NM and len(set(wpos)) == NDMA, wpos
    worder = list(range(NDMA))
    if alds:
        worder = [6, 0, 1, 7, 2, 3, 8, 4, 9, 5]
    ops = []
    for b in range(NST):
        for n, i in enumerate(worder):
            ops.append(((b - PW) * NM + wpos[n], 1, ("W", b, i)))
        if not alds:
            for ss in range(SS):
                for i in range(MT):
                    ops.append(((b - RA) * NM + ss * PER + (NT - 1) * MT + i, 0, ("A", b, ss, i)))
    ops.sort()
    pre_ops = [o for o in ops if o[2][1] == 0 and o[2][0] == "W"] + [o for o in ops if o[2][1] == 0 and o[2][0] == "A"]
    queue = [o for o in ops if o[2][1] != 0]
    pre_ops2 = []
    if alds:
        pre_ops2 = [o for o in queue if o[2][1] == 1]
        queue = [o for o in queue if o[2][1] != 1]
    sim = Sim()

    def out(items):
        for l in sim.emit(items):
            k(l)

    if alds:
        k(f"s_add_u32 s{S_K0}, s{S_RB}, s{S_CB}")
        k(f"s_and_b32 s{S_K0}, s{S_K0}, 15")
        k(f"s_lshl_b32 s{S_AOFF}, s{S_K0}, 7")
        k(f"s_mul_i32 s{S_WOFF}, s{S_K0}, {WSTEP}")
    else:
        k(f"s_mov_b32 s{S_AOFF}, 0")
        k(f"s_mov_b32 s{S_WOFF}, 0")
    out([make_vm(o[2]) for o in pre_ops])
    out([make_vm(o[2]) for o in pre_ops2])
    k(f"s_mov_b32 s{S_MASK}, 0xffff0000")
    k(f"v_bfe_u32 v{TT}, v{L}, 2, 2")
    k(f"v_lshrrev_b32 v{TT + 1}, 5, v{L}")
    k(f"v_mul_u32_u24 v{TT + 3}, {HS}, v{TT + 1}")
    k(f"v_add_u32 v{TT + 3}, v{TT + 3}, v{TT}")
    k(f"v_mul_u32_u24 v{TT + 3}, {RSTR}, v{TT + 3}")
    k(f"v_and_b32 v{TT + 2}, 3, v{L}")
    k(f"v_lshl_add_u32 v{TT + 3}, v{TT + 2}, 3, v{TT + 3}")
    k(f"v_bfe_u32 v{TT + 2}, v{L}, 4, 1")
    if kind == "gu":
        k(f"v_mul_u32_u24 v{TT + 2}, {UPOFF}, v{TT + 2}")
        k(f"v_add_u32 v{V_RB}, v{TT + 3}, v{TT + 2}")
    else:
        k(f"v_lshl_add_u32 v{TT + 3}, v{TT + 2}, 5, v{TT + 3}")
        k(f"v_bfe_u32 v{TT + 2}, v{L}, 3, 1")
        k(f"v_lshl_add_u32 v{V_RB}, v{TT + 2}, 6, v{TT + 3}")
        k(f"v_xor_b32 v{V_RB + 1}, 64, v{V_RB}")
    for g in range(1, NG):
        for h in range(NH):
            k(f"v_add_u32 v{V_RB + g * NH + h}, {g * SPG * SLOT}, v{V_RB + h}")
    V_M8 = V_ST + 3

    def spread(G0, G1, items, per=2):
        g = G0
        n = 0
        for it in items:
            if isinstance(it, str):
                it = T(it)
            post[g].append(it)
            if it.kind not in ("needv", "needd"):
                n += 1
            if n >= per:
                n = 0
                g += 1
                assert g <= G1, (g, G1)
        return g

    tail_code = []
    x_reads = []
    if alds:
        k(f"v_and_b32 v{TT}, 31, v{L}")
        k(f"v_bfe_u32 v{TT + 2}, v{L}, 1, 3")
        k(f"v_xor_b32 v{TT + 2}, v{TT + 2}, v{TT + 1}")
        k(f"v_lshlrev_b32 v{TT + 3}, 7, v{TT}")
        k(f"v_lshl_add_u32 v{TT + 3}, v{TT + 2}, 4, v{TT + 3}")
        k(f"v_add_u32 v{V_AR}, s{S_ABASE}, v{TT + 3}")
        for ss in range(1, 4):
            k(f"v_xor_b32 v{V_AR + ss}, {32 * ss}, v{V_AR}")
        k(f"s_and_b32 s{S_TMP + 2}, s{S_WAVE}, 1")
        k(f"s_lshl_b32 s{S_TMP + 2}, s{S_TMP + 2}, 6")
        k(f"v_xor_b32 v{TT + 4}, s{S_TMP + 2}, v{V_RB}")
        k(f"s_lshr_b32 s{S_TMP + 3}, s{S_WAVE}, 1")
        k(f"s_lshl_b32 s{S_TMP + 3}, s{S_TMP + 3}, 13")
        k(f"v_add_u32 v{TT + 5}, s{S_TMP + 3}, v{TT + 4}")
        SEL = V_XF
        k(f"v_lshrrev_b32 v{TT}, 4, v{L}")
        k(f"v_xor_b32 v{TT}, v{TT}, v{L}")
        k(f"v_and_b32 v{TT}, 1, v{TT}")
        k(f"v_cmp_eq_u32 vcc, 0, v{TT}")
        k(f"v_mov_b32 v{TT + 2}, 0x3f803f80")
        k(f"v_mov_b32 v{V_ST}, 0")
        k(f"v_mov_b32 v{V_ST + 1}, 0")
        for r in range(4):
            k(f"v_cndmask_b32 v{SEL + r}, 0, v{TT + 2}, vcc")
        XA, WA, D0, D1 = V_X, V_CS, V_RSR, V_RSR + 4
        for ss in range(4):
            x_reads.append(DS(("xa", ss), f"ds_read_b128 v[{XA + 4 * ss}:{XA + 4 * ss + 3}], v{V_AR + ss}"))
        for p in range(2):
            for ss in range(4):
                for h in range(2):
                    off = (ss * 16 + S2 * h) * RSTR + (16384 if p else 0)
                    b = WA + p * 16 + ss * 4 + h * 2
                    x_reads.append(DS(("wa", p, ss, h), f"ds_read_b64_tr_b16 v[{b}:{b + 1}], v{TT + 4 if p else TT + 5} offset:{off}"))
        gx = spread(0, NM, x_reads, per=1) - 12
        x_reads = []
        for n_, itx in enumerate(pre[bar_at[2]]):
            if itx.kind == "bar":
                pre[bar_at[2]].insert(n_, NEEDD(("wa", 1, 3, 1)))
                break
        it = srd_lines(S_R, S_WS, WS_ST1, 64 * 4096) + srd_lines(S_O, S_WS, WS_CS1, 16 * 12288)
        for ss in range(4):
            it.append(NEEDD(("xa", ss)))
            for d in range(4):
                s_ = XA + 4 * ss + d
                it += [f"v_lshlrev_b32 v{TT}, 16, v{s_}", f"v_and_b32 v{TT + 1}, s{S_MASK}, v{s_}",
                       f"v_add_f32 v{V_ST}, v{V_ST}, v{TT}", f"v_fmac_f32 v{V_ST + 1}, v{TT}, v{TT}",
                       f"v_add_f32 v{V_ST}, v{V_ST}, v{TT + 1}", f"v_fmac_f32 v{V_ST + 1}, v{TT + 1}, v{TT + 1}"]
                if d % 2 == 1:
                    n = ss * 2 + d // 2
                    p, s2_ = n // 4, n % 4
                    dd = D1 if p else D0
                    it.append(NEEDD(("wa", p, s2_)))
                    it.append(f"v_mfma_f32_16x16x32_bf16 {vr(dd, 4)}, {vr(WA + p * 16 + s2_ * 4, 4)}, {vr(SEL, 4)}, {'0' if s2_ == 0 else vr(dd, 4)}")
        it += [f"v_mov_b32 v{TT}, v{V_ST}", f"v_mov_b32 v{TT + 1}, v{V_ST + 1}",
               f"v_lshlrev_b32 v{TT + 5}, 3, v{L}", f"v_and_b32 v{TT + 4}, 1, v{L}",
               f"v_permlane32_swap_b32 v{V_ST}, v{TT}", f"v_permlane32_swap_b32 v{V_ST + 1}, v{TT + 1}",
               f"s_lshl_b32 s{S_TMP + 2}, s{S_MT}, 12", f"s_lshl_b32 s{S_TMP + 3}, s{S_CB}, 8",
               f"s_add_u32 s{S_TMP + 2}, s{S_TMP + 2}, s{S_TMP + 3}",
               f"v_add_f32 v{TT}, v{V_ST}, v{TT}", f"v_add_f32 v{TT + 1}, v{V_ST + 1}, v{TT + 1}",
               f"v_lshlrev_b32 v{TT + 4}, 6, v{TT + 4}", f"v_and_b32 v{TT + 6}, 48, v{L}",
               f"v_mov_b32_dpp v{TT + 2}, v{TT} quad_perm:[1,1,3,3] row_mask:0xf bank_mask:0xf",
               f"v_mov_b32_dpp v{TT + 3}, v{TT + 1} quad_perm:[1,1,3,3] row_mask:0xf bank_mask:0xf",
               f"v_add_u32 v{TT + 4}, v{TT + 4}, v{TT + 6}",
               VM(("ST", 0), f"s_mov_b32 exec_lo, 0x55555555\ns_mov_b32 exec_hi, 0\nbuffer_store_dwordx4 v[{TT}:{TT + 3}], v{TT + 5}, s[{S_R}:{S_R + 3}], s{S_TMP + 2} offen sc1\ns_mov_b64 exec, -1"),
               f"s_mul_i32 s{S_TMP + 2}, s{S_RB}, 12288", f"s_mul_i32 s{S_TMP + 3}, s{S_CB}, 768",
               f"s_add_u32 s{S_TMP + 2}, s{S_TMP + 2}, s{S_TMP + 3}",
               f"s_lshl_b32 s{S_TMP + 3}, s{S_WAVE}, 7", f"s_add_u32 s{S_TMP + 3}, s{S_TMP + 3}, s{S_TMP + 2}",
               f"s_and_b32 s{S_TMP + 5}, s{S_WAVE}, 1", f"s_lshl_b32 s{S_TMP + 5}, s{S_TMP + 5}, 7",
               f"s_add_u32 s{S_TMP + 2}, s{S_TMP + 2}, s{S_TMP + 5}",
               VM(("ST", 1), f"s_mov_b32 exec_lo, 0x00030003\ns_mov_b32 exec_hi, 0x00030003\nbuffer_store_dwordx4 v[{D0}:{D0 + 3}], v{TT + 4}, s[{S_O}:{S_O + 3}], s{S_TMP + 3} offen sc1\ns_mov_b64 exec, -1"),
               VM(("ST", 2), f"s_mov_b32 exec_lo, 0x00030003\ns_mov_b32 exec_hi, 0x00030003\nbuffer_store_dwordx4 v[{D1}:{D1 + 3}], v{TT + 4}, s[{S_O}:{S_O + 3}], s{S_TMP + 2} offen offset:512 sc1\ns_mov_b64 exec, -1")]
        BSIG, BPOL = 4, 9
        g2 = bar_at[BSIG]
        gx = spread(gx, g2 - 30, it, per=3)
        pre[g2] = [NEEDV(("ST", i)) for i in range(3)] + pre[g2]
        N0, F0 = TT + 2, TT + 4
        def spin(lbl, load, cmp_, want):
            return [f"s_mov_b32 s{S_TMP + 6}, 0x8000", f"{k.L(lbl)}:", "s_waitcnt vmcnt(0)", cmp_, "s_nop 1", f"s_cmp_eq_u64 vcc, {want}",
                    f"s_cbranch_scc1 {k.L(lbl + '_ok')}", "s_sleep 2", load, f"s_sub_u32 s{S_TMP + 6}, s{S_TMP + 6}, 1",
                    f"s_cmp_lg_u32 s{S_TMP + 6}, 0", f"s_cbranch_scc1 {k.L(lbl)}", f"{k.L(lbl + '_ok')}:"]
        h = [f"{k.L('helper')}:", f"s_memrealtime s[{S_TMP + 2}:{S_TMP + 3}]", f"v_mov_b32 v{TT + 1}, 0", "s_waitcnt lgkmcnt(0)"]
        h += srd_lines(S_D, S_P1, 0, 256)
        h += ["s_cmp_lg_u32 s2, 0", f"s_cbranch_scc1 {k.L('nononce')}",
              f"s_or_b32 s{S_TMP + 2}, s{S_TMP + 2}, 1", f"v_mov_b32 v{N0}, s{S_TMP + 2}", f"v_mov_b32 v{N0 + 1}, s{S_TMP + 3}", "s_mov_b64 exec, 1",
              f"buffer_store_dwordx2 v[{N0}:{N0 + 1}], v{TT + 1}, s[{S_D}:{S_D + 3}], 0 offen sc1", "s_mov_b64 exec, -1", "s_waitcnt vmcnt(0)", f"{k.L('nononce')}:"]
        h += code_srd(S_C, k.L("pc0"), k.L("end"), back=True) + [f"v_lshlrev_b32 v{TT}, 7, v{L}", f"s_mov_b32 s{S_TMP}, 8192", f"s_mov_b32 s{S_TMP + 1}, 16384"]
        h += [f"buffer_load_dword v{TT + 6}, v{TT}, s[{S_C}:{S_C + 3}], {so} offen" for so in ("0", f"s{S_TMP}", f"s{S_TMP + 1}")]
        nl = f"buffer_load_dwordx2 v[{N0}:{N0 + 1}], v{TT + 1}, s[{S_D}:{S_D + 3}], 0 offen sc1"
        h += ["s_barrier", nl, "s_barrier", "s_barrier"] + spin("spinn", nl, f"v_cmp_eq_u32 vcc, 0, v{N0}", "0")
        h += srd_lines(S_R, S_WS, WS_FLG, 4 * 256 * 128)
        h += [f"v_mov_b32 v{V_X + r}, 0" for r in range(4)]
        h += [f"v_lshlrev_b32 v{TT + 6}, 15, v{L}", f"s_lshl_b32 s{S_TMP + 4}, s2, 7", f"s_add_u32 s{S_TMP + 4}, s{S_TMP + 4}, 32768", "s_mov_b64 exec, 7",
              f"buffer_store_dwordx4 v[{V_X}:{V_X + 3}], v{TT + 6}, s[{S_R}:{S_R + 3}], s{S_TMP + 4} offen sc1", "s_mov_b64 exec, -1"]
        h += [f"v_and_b32 v{TT + 6}, 15, v{L}", f"s_lshl_b32 s{S_TMP + 4}, s{S_RB}, 4", f"v_add_u32 v{TT + 7}, s{S_TMP + 4}, v{TT + 6}",
              f"v_lshlrev_b32 v{TT + 6}, 4, v{TT + 6}", f"v_add_u32 v{TT + 6}, s{S_CB}, v{TT + 6}", f"v_and_b32 v{F0}, 16, v{L}",
              f"v_cmp_eq_u32 vcc, 0, v{F0}", f"s_add_u32 s{S_TMP + 4}, s{S_TMP + 4}, s{S_CB}", f"s_lshl_b32 s{S_TMP + 4}, s{S_TMP + 4}, 7",
              f"v_cndmask_b32 v{TT + 7}, v{TT + 6}, v{TT + 7}, vcc", f"v_lshlrev_b32 v{TT + 7}, 7, v{TT + 7}"]
        h += ["s_barrier"] * (BSIG - 2)
        h += ["s_mov_b64 exec, 1", f"buffer_store_dwordx2 v[{N0}:{N0 + 1}], v{TT + 1}, s[{S_R}:{S_R + 3}], s{S_TMP + 4} offen sc1", "s_mov_b64 exec, -1"]
        pl = f"buffer_load_dwordx2 v[{F0}:{F0 + 1}], v{TT + 7}, s[{S_R}:{S_R + 3}], 0 offen sc1"
        h += ["s_barrier"] * (BPOL - BSIG - 2)
        h += [pl, "s_barrier"] + spin("spinf", pl, f"v_cmp_eq_u64 vcc, v[{N0}:{N0 + 1}], v[{F0}:{F0 + 1}]", "-1") + ["s_barrier"] * (NST - 1 - BPOL)
        h += code_srd(S_C, c.nxt, c.nxt_end) + [f"buffer_load_dword v{TT + 6}, v{TT}, s[{S_C}:{S_C + 3}], {so} offen" for so in ("0", f"s{S_TMP}", f"s{S_TMP + 1}")]
        h += ["s_endpgm"]
        tail_code += h
        t0 = NST - 4
        tp = BPOL - 2
        g = bar_at[BPOL]
        post[tp * NM] += [T(f"v_lshlrev_b32 v{TT}, 2, v{L}")]
        it = [f"v_and_b32 v{TT + 2}, 31, v{L}", f"v_lshlrev_b32 v{TT + 2}, 3, v{TT + 2}", f"v_lshrrev_b32 v{TT + 3}, 5, v{L}",
              f"v_lshl_add_u32 v{TT + 2}, v{TT + 3}, 11, v{TT + 2}", f"s_lshl_b32 s{S_TMP + 2}, s{S_MT}, 12",
              f"s_min_u32 s{S_TMP + 5}, s{S_WAVE}, 2", f"s_mul_i32 s{S_TMP + 3}, s{S_CB}, 768", f"s_lshl_b32 s{S_TMP + 6}, s{S_TMP + 5}, 8",
              f"s_add_u32 s{S_TMP + 3}, s{S_TMP + 3}, s{S_TMP + 6}"]
        spread(tp * NM + 1, (tp + 1) * NM, it, per=1)
        it = []
        for sl in range(16):
            it.append(VM(("CSL", sl), f"buffer_load_dword v{V_CS + sl}, v{TT}, s[{S_O}:{S_O + 3}], s{S_TMP + 3} offen sc1",
                         [f"s_add_u32 s{S_TMP + 3}, s{S_TMP + 3}, 12288"] if sl else []))
        for q in range(8):
            it.append(VM(("STL", q), f"buffer_load_dwordx2 v[{V_X + 2 * q}:{V_X + 2 * q + 1}], v{TT + 2}, s[{S_R}:{S_R + 3}], s{S_TMP + 2} offen offset:{q * 256} sc1"))
        g = spread(g, g + 2 * NM, it, per=1) + 12
        it = [NEEDV(("CSL", 15))] + [f"v_add_f32 v{V_CS}, v{V_CS}, v{V_CS + sl}" for sl in range(1, 16)]
        it += cs_split(V_CS, V_CS + 1, V_CS + 4, S_MASK)
        it += [f"s_lshl_b32 s{S_TMP + 6}, s{S_TMP + 5}, 10", f"v_add_u32 v{TT + 3}, s{S_TMP + 6}, v{V_AO}"]
        it += [NEEDV(("STL", 7))]
        for q in range(1, 8):
            it += [f"v_add_f32 v{V_X}, v{V_X}, v{V_X + 2 * q}", f"v_add_f32 v{V_X + 1}, v{V_X + 1}, v{V_X + 2 * q + 1}"]
        it += ln_scalars(V_X, V_X + 4, V_ST + 1, V_ST, V_XF, S_MASK, L)
        it += [f"s_lshl_b32 s{S_TMP + 6}, s{S_WAVE}, 7", f"v_and_b32 v{TT + 4}, 31, v{L}", f"v_lshlrev_b32 v{TT + 5}, 4, v{TT + 4}",
               f"v_lshlrev_b32 v{TT + 4}, 2, v{TT + 4}", f"v_add_u32 v{TT + 4}, s{S_TMP + 6}, v{TT + 4}",
               f"v_lshrrev_b32 v{TT + 6}, 5, v{L}", f"v_lshlrev_b32 v{TT + 6}, 4, v{TT + 6}", f"v_add_u32 v{TT + 6}, s{S_TMP + 6}, v{TT + 6}",
               f"v_mul_f32 v{V_ST + 2}, {f32bits(LOG2E / math.sqrt(DH)):#x}, v{V_ST}"]
        g = spread(g, bar_at[NST - 1] - 4, it, per=2)
        g = max(g + 1, (t0 + 2) * NM)
        post[g].append(DS(("AUGW",), f"ds_write_b128 v{TT + 3}, v[{V_CS + 4}:{V_CS + 7}]"))
        post[g + 1].append(DS(("RSW",), f"ds_write_b32 v{TT + 4}, v{V_ST} offset:4096"))
        gb = bar_at[NST - 1]
        pre[gb] = [NEEDD(("AUGW",)), NEEDD(("RSW",))] + pre[gb]
        it = [DS(("AUG", j), f"ds_read_b128 v[{V_AUG + 4 * j}:{V_AUG + 4 * j + 3}], v{TT + 5} offset:{j * 512}") for j in range(6)]
        it += [DS(("RSR", a), f"ds_read_b128 v[{V_RSR + 4 * a}:{V_RSR + 4 * a + 3}], v{TT + 6} offset:{4096 + a * 32}") for a in range(4)]
        spread(gb, NG_, it, per=1)
    elif kind == "gu":
        it = srd_lines(S_R, S_WS, WS_ST2, 64 * 4096) + srd_lines(S_O, S_WS, WS_AUG, 32 * 3584) + [
            f"v_and_b32 v{TT}, 31, v{L}", f"v_lshlrev_b32 v{TT + 2}, 4, v{TT}", f"v_lshlrev_b32 v{TT}, 3, v{TT}",
            f"v_lshrrev_b32 v{TT + 1}, 5, v{L}", f"v_lshl_add_u32 v{TT}, v{TT + 1}, 11, v{TT}",
            f"s_lshl_b32 s{S_TMP + 2}, s{S_MT}, 12", f"s_add_u32 s{S_TMP + 3}, s{S_TMP + 2}, 4096", f"s_mul_i32 s{S_TMP + 4}, s{S_CB}, 3584"]
        t0 = NST - 4
        g = spread(t0 * NM, t0 * NM + 20, it, per=1)
        gs = [x for x in range((t0 + 1) * NM + bar_gap, NG_) if x % 2 == 0]
        n = 0
        for i in range(MT):
            for q in range(8):
                b = A_ST + i * 16 + q * 2
                post[gs[n]].append(VM(("STL", i, q), f"buffer_load_dwordx2 a[{b}:{b + 1}], v{TT}, s[{S_R}:{S_R + 3}], s{S_TMP + 2 + i} offen offset:{q * 256}"))
                n += 1
        for j in range(NT):
            post[gs[n]].append(VM(("AUG", j), f"buffer_load_dwordx4 a[{A_AUG + 4 * j}:{A_AUG + 4 * j + 3}], v{TT + 2}, s[{S_O}:{S_O + 3}], s{S_TMP + 4} offen offset:{j * 512}"))
            n += 1
        spread(t0 * NM + 24, NG_, code_srd(S_C, c.nxt, c.nxt_end) + [f"s_lshl_b32 s{S_TMP + 5}, s{S_WAVE}, 13", f"v_lshlrev_b32 v{TT + 3}, 7, v{L}"], per=1)
        post[gs[n]].append(VM(("PFC",), f"buffer_load_dword {DUMMY}, v{TT + 3}, s[{S_C}:{S_C + 3}], s{S_TMP + 5} offen"))
        n += 1
        it = []
        for i in range(MT):
            b = A_ST + i * 16
            it += [NEEDV(("STL", i, 7)), f"v_accvgpr_read_b32 v{TT}, a{b}", f"v_accvgpr_read_b32 v{TT + 1}, a{b + 1}"]
            for q in range(1, 8):
                it += [f"v_accvgpr_read_b32 v{TT + 2}, a{b + 2 * q}", f"v_accvgpr_read_b32 v{TT + 3}, a{b + 2 * q + 1}",
                       f"v_add_f32 v{TT}, v{TT}, v{TT + 2}", f"v_add_f32 v{TT + 1}, v{TT + 1}, v{TT + 3}"]
            it += ln_scalars(TT, TT + 4, V_ST + 2 * i + 1, V_ST + 2 * i, V_XF + 4 * i, S_MASK, L)
            it += [f"v_mul_f32 v{V_ST + 2 * i}, {f32bits(-LOG2E):#x}, v{V_ST + 2 * i}"]
        spread(gs[n] + 6, NG_, it, per=3)
    elif kind == "out":
        t0 = NST - 4
        it = srd_lines(S_R, S_P2, 0, S * D * 2) + srd_lines(S_O, S_WS, WS_CSP, 16 * 2 * F * 4) + [
            f"v_and_b32 v{TT}, 31, v{L}", f"v_lshlrev_b32 v{TT}, 11, v{TT}", f"v_lshrrev_b32 v{TT + 1}, 5, v{L}",
            f"v_lshl_add_u32 v{TT}, v{TT + 1}, 4, v{TT}",
            f"s_lshl_b32 s{S_TMP + 2}, s{S_MT}, 16", f"s_lshl_b32 s{S_TMP + 3}, s{S_CB}, 7", f"s_add_u32 s{S_TMP + 2}, s{S_TMP + 2}, s{S_TMP + 3}",
            f"v_lshrrev_b32 v{TT + 1}, 3, v{L}", f"v_mul_u32_u24 v{TT + 1}, {2 * F * 4}, v{TT + 1}", f"v_and_b32 v{TT + 2}, 7, v{L}",
            f"v_lshl_add_u32 v{TT + 1}, v{TT + 2}, 2, v{TT + 1}",
            f"s_mul_i32 s{S_TMP + 3}, s2, 112", f"s_mul_i32 s{S_TMP + 4}, s{S_WAVE}, 28", f"s_add_u32 s{S_TMP + 3}, s{S_TMP + 3}, s{S_TMP + 4}",
            f"s_add_u32 s{S_TMP + 4}, s{S_TMP + 3}, {8 * 2 * F * 4}"]
        spread((t0 - 2) * NM, t0 * NM, it, per=1)
        it = [VM(("X", b), f"buffer_load_dwordx4 v[{V_X + 4 * b}:{V_X + 4 * b + 3}], v{TT}, s[{S_R}:{S_R + 3}], s{S_TMP + 2} offen offset:{b * 32}") for b in range(4)]
        it += [VM(("CSL", 0), f"buffer_load_dword v{V_CS}, v{TT + 1}, s[{S_O}:{S_O + 3}], s{S_TMP + 3} offen"),
               VM(("CSL", 1), f"buffer_load_dword v{V_CS + 1}, v{TT + 1}, s[{S_O}:{S_O + 3}], s{S_TMP + 4} offen")]
        spread(t0 * NM, NG_, it, per=1)
    elif kind == "down":
        t0 = NST - 3
        it = srd_lines(S_R, S_WS, WS_H, S * D * 2) + [
            f"s_lshl_b32 s{S_TMP + 2}, s{S_MT}, 16", f"s_lshl_b32 s{S_TMP + 3}, s{S_CB}, 12", f"s_add_u32 s{S_TMP + 2}, s{S_TMP + 2}, s{S_TMP + 3}"]
        spread((t0 - 1) * NM, t0 * NM, it, per=1)
        it = [VM(("X", b), f"buffer_load_dwordx4 v[{V_X + 4 * b}:{V_X + 4 * b + 3}], v{V_AO}, s[{S_R}:{S_R + 3}], s{S_TMP + 2} offen offset:{b * 1024}") for b in range(4)]
        spread(t0 * NM, NG_, it, per=1)

    out([NEEDV(("W", 0, i)) for i in range(NDMA)] + [Item("bar")])
    out(first_reads)
    k.stamp(1)
    k.label("pc0")

    def cap(G):
        if PER == 2:
            return 2
        if MT == 1:
            return 1
        return 1 if G % 2 == 0 else 0

    if os.environ.get("QST") and alds:
        for n_, G in enumerate(eval(os.environ["QST"])):
            pre[G].insert(0, T(f"s_memtime s[{60 + 2 * (2 + n_)}:{61 + 2 * (2 + n_)}]  ; STAMP\ns_waitcnt lgkmcnt(0)  ; STAMP"))
    groups = []
    for grp in range(NST // UN):
        lines = []
        for G in range(grp * UN * NM, (grp + 1) * UN * NM):
            lines += sim.emit(pre[G])
            lines.append(mfma[G])
            items = list(post[G])
            n = 0
            while queue and queue[0][0] <= G:
                if queue[0][0] < G and n >= cap(G):
                    break
                items.append(make_vm(queue.pop(0)[2]))
                n += 1
            lines += sim.emit(items)
        groups.append(lines)
    assert not queue
    if os.environ.get("QST") and alds:
        fold(k, groups, S_CNT)
    else:
        if fold(k, groups, S_CNT)[1] < 2:
            k.stamp(2)
            k.stamp(3)
        k.stamp(4)
        k.stamp(5)

    if kind == "qkv":
        out([NEEDD(("AUG", 5)), NEEDD(("RSR", 3))])
        for j in range(NT):
            a, w = vr(V_XF, 4), vr(V_AUG + 4 * j, 4)
            x, y = (a, w) if j >= 4 else (w, a)
            k(f"{M32} {vr(acc(j, 0), 16)}, {x}, {y}, {vr(acc(j, 0), 16)}")
        srd(k, S_O, S_WS, WS_Q, 12 * MB)
        k(f"s_lshl_b32 s{S_TMP + 4}, s{S_MT}, 11")
        k(f"s_mov_b32 s{S_PR}, s{S_CB}")
        k.stamp(6)
        k("s_nop 3")
        for j in range(NT):
            t, h64 = j // 2, j % 2
            k(f"s_lshl_b32 s{S_TMP + 5}, s{S_PR + t}, 18")
            k(f"s_add_u32 s{S_TMP + 5}, s{S_TMP + 5}, s{S_TMP + 4}")
            k(f"s_add_u32 s{S_TMP + 3}, s{S_TMP + 5}, {t * 4 * MB + h64 * 131072}")
            a0 = acc(j, 0)
            for r in range(0, 16, 2):
                aa = f"v[{a0 + r}:{a0 + r + 1}]"
                if t == 0:
                    k(f"v_pk_mul_f32 {aa}, {aa}, v[{V_ST + 2}:{V_ST + 3}] op_sel_hi:[1,0]")
                elif t == 1:
                    k(f"v_pk_mul_f32 {aa}, {aa}, v[{V_ST}:{V_ST + 1}] op_sel_hi:[1,0]")
                else:
                    k(f"v_pk_mul_f32 {aa}, {aa}, v[{V_RSR + r}:{V_RSR + r + 1}]")
            for blk in range(2):
                pb = a0 + blk * 8
                for q in range(4):
                    k(f"v_cvt_pk_bf16_f32 v{pb + q}, v{a0 + blk * 8 + 2 * q}, v{a0 + blk * 8 + 2 * q + 1}")
                k(f"buffer_store_dwordx4 v[{pb}:{pb + 3}], v{V_AO}, s[{S_O}:{S_O + 3}], s{S_TMP + 3} offen offset:{blk * 1024}{SC}")
    elif kind == "out":
        srd(k, S_O, S_WS, WS_H, S * D * 2)
        k(f"s_lshl_b32 s{S_TMP + 3}, s{S_MT}, 16")
        k(f"s_lshl_b32 s{S_TMP + 4}, s{S_CB}, 12")
        k(f"s_add_u32 s{S_TMP + 3}, s{S_TMP + 3}, s{S_TMP + 4}")
        for r in range(4):
            k(f"v_mov_b32 v{V_ST + r}, 0")
        out([NEEDV(("X", 3)), NEEDV(("CSL", 1))])
        k.stamp(6)
        for b in range(4):
            k(f"v_permlane32_swap_b32 v{V_X + 4 * b}, v{V_X + 4 * b + 2}")
            k(f"v_permlane32_swap_b32 v{V_X + 4 * b + 1}, v{V_X + 4 * b + 3}")
    if kind in ("out", "down"):
        if kind == "down":
            srd(k, S_O, S_P2, 0, S * D * 2)
            k(f"v_and_b32 v{TT + 4}, 31, v{L}")
            k(f"v_lshlrev_b32 v{TT + 4}, 11, v{TT + 4}")
            k(f"v_lshrrev_b32 v{TT + 1}, 5, v{L}")
            k(f"v_lshl_add_u32 v{TT + 4}, v{TT + 1}, 4, v{TT + 4}")
            k(f"s_lshl_b32 s{S_TMP + 3}, s{S_MT}, 16")
            k(f"s_lshl_b32 s{S_TMP + 4}, s{S_CB}, 7")
            k(f"s_add_u32 s{S_TMP + 3}, s{S_TMP + 3}, s{S_TMP + 4}")
            out([NEEDV(("X", 3))])
            k.stamp(6)
            k("s_nop 3")
        for j in range(NT):
            a0 = acc(j, 0)
            for blk in range(2):
                pb = V_P + (j * 2 + blk) * 4
                for q in range(4):
                    r0, r1 = a0 + blk * 8 + 2 * q, a0 + blk * 8 + 2 * q + 1
                    xs_ = V_X + (j * 2 + blk) * 4 + q
                    k(f"v_lshlrev_b32 v{TT + 2}, 16, v{xs_}")
                    k(f"v_and_b32 v{TT + 3}, s{S_MASK}, v{xs_}")
                    k(f"v_pk_add_f32 v[{r0}:{r1}], v[{r0}:{r1}], v[{TT + 2}:{TT + 3}]")
                    k(f"v_cvt_pk_bf16_f32 v{pb + q}, v{r0}, v{r1}")
                if kind == "out":
                    k(f"buffer_store_dwordx4 v[{pb}:{pb + 3}], v{V_AO}, s[{S_O}:{S_O + 3}], s{S_TMP + 3} offen offset:{(j * 2 + blk) * 1024}{SC}")
                else:
                    k("s_nop 1")
                    k(f"v_permlane32_swap_b32 v{pb}, v{pb + 2}")
                    k(f"v_permlane32_swap_b32 v{pb + 1}, v{pb + 3}")
                    k(f"buffer_store_dwordx4 v[{pb}:{pb + 3}], v{TT + 4}, s[{S_O}:{S_O + 3}], s{S_TMP + 3} offen offset:{j * 64 + blk * 32}")
    if kind == "out":
        for q in range(NT * 8):
            k(f"v_lshlrev_b32 v{TT}, 16, v{V_P + q}")
            k(f"v_and_b32 v{TT + 1}, s{S_MASK}, v{V_P + q}")
            k(f"v_pk_add_f32 v[{V_ST}:{V_ST + 1}], v[{V_ST}:{V_ST + 1}], v[{TT}:{TT + 1}]")
            k(f"v_pk_fma_f32 v[{V_ST + 2}:{V_ST + 3}], v[{TT}:{TT + 1}], v[{TT}:{TT + 1}], v[{V_ST + 2}:{V_ST + 3}]")
        k(f"v_add_f32 v{V_ST}, v{V_ST}, v{V_ST + 1}")
        k(f"v_add_f32 v{V_ST + 1}, v{V_ST + 2}, v{V_ST + 3}")
        k(f"v_mov_b32 v{TT}, v{V_ST}")
        k(f"v_mov_b32 v{TT + 1}, v{V_ST + 1}")
        srd(k, S_R, S_WS, WS_ST2, 64 * 4096)
        k(f"v_permlane32_swap_b32 v{V_ST}, v{TT}")
        k(f"v_permlane32_swap_b32 v{V_ST + 1}, v{TT + 1}")
        k(f"s_lshl_b32 s{S_TMP + 3}, s{S_MT}, 12")
        k(f"s_lshl_b32 s{S_TMP + 4}, s{S_CB}, 8")
        k(f"s_add_u32 s{S_TMP + 3}, s{S_TMP + 3}, s{S_TMP + 4}")
        k(f"v_add_f32 v{TT}, v{V_ST}, v{TT}")
        k(f"v_add_f32 v{TT + 1}, v{V_ST + 1}, v{TT + 1}")
        k(f"v_lshlrev_b32 v{TT + 4}, 3, v{L}")
        k("s_nop 0")
        k(f"v_mov_b32_dpp v{TT + 2}, v{TT} quad_perm:[1,1,3,3] row_mask:0xf bank_mask:0xf")
        k(f"v_mov_b32_dpp v{TT + 3}, v{TT + 1} quad_perm:[1,1,3,3] row_mask:0xf bank_mask:0xf")
        k("s_mov_b32 exec_lo, 0x55555555")
        k("s_mov_b32 exec_hi, 0")
        k(f"buffer_store_dwordx4 v[{TT}:{TT + 3}], v{TT + 4}, s[{S_R}:{S_R + 3}], s{S_TMP + 3} offen{SC}")
        k("s_mov_b64 exec, -1")
        C = V_CS
        k(f"v_add_f32 v{C}, v{C}, v{C + 1}")
        k("s_nop 1")
        k(f"v_add_f32_dpp v{C}, v{C}, v{C} row_ror:8 row_mask:0xf bank_mask:0xf")
        k(f"s_and_b32 s{S_TMP + 2}, s2, 3")
        k(f"v_mov_b32 v{C + 1}, v{C}")
        k(f"s_mul_i32 s{S_TMP + 2}, s{S_TMP + 2}, 28")
        k(f"s_mul_i32 s{S_TMP + 3}, s{S_WAVE}, 7")
        k(f"v_permlane16_swap_b32 v{C}, v{C + 1}")
        k(f"s_add_u32 s{S_TMP + 2}, s{S_TMP + 2}, s{S_TMP + 3}")
        k("s_nop 0")
        k(f"v_add_f32 v{C}, v{C}, v{C + 1}")
        k(f"v_mov_b32 v{C + 1}, v{C}")
        k("s_nop 1")
        k(f"v_permlane32_swap_b32 v{C}, v{C + 1}")
        k("s_nop 1")
        k(f"v_add_f32 v{C}, v{C}, v{C + 1}")
        for l in cs_split(C, C + 1, C + 4, S_MASK):
            k(l)
        srd(k, S_O, S_WS, WS_AUG, 32 * 3584)
        k(f"v_add_u32 v{TT}, s{S_TMP + 2}, v{L}")
        k(f"v_lshrrev_b32 v{TT + 1}, 4, v{TT}")
        k(f"v_lshlrev_b32 v{TT + 1}, 9, v{TT + 1}")
        k(f"v_and_b32 v{TT}, 15, v{TT}")
        k(f"v_lshl_add_u32 v{TT}, v{TT}, 4, v{TT + 1}")
        k(f"s_bfe_u32 s{S_TMP + 2}, s2, {2 | (5 << 16)}")
        k(f"s_mul_i32 s{S_TMP + 2}, s{S_TMP + 2}, 3584")
        k(f"s_lshr_b32 s{S_TMP + 3}, s2, 7")
        k(f"s_lshl_b32 s{S_TMP + 3}, s{S_TMP + 3}, 8")
        k(f"s_add_u32 s{S_TMP + 2}, s{S_TMP + 2}, s{S_TMP + 3}")
        k("s_mov_b64 exec, 0x7f")
        k(f"buffer_store_dwordx4 v[{C + 4}:{C + 7}], v{TT}, s[{S_O}:{S_O + 3}], s{S_TMP + 2} offen{SC}")
        k("s_mov_b64 exec, -1")
    elif kind == "gu":
        out([NEEDV(("AUG", NT - 1))])
        k("s_nop 1")
        for i in range(MT):
            for j in range(NT):
                k(f"{M32} {vr(acc(j, i), 16)}, a[{A_AUG + 4 * j}:{A_AUG + 4 * j + 3}], {vr(V_XF + 4 * i, 4)}, {vr(acc(j, i), 16)}")
        srd(k, S_O, S_WS, WS_ACT, S * F * 2)
        k.stamp(6)
        for i in range(MT):
            k(f"s_add_u32 s{S_TMP + 3}, s{S_MT}, {i}")
            k(f"s_mul_i32 s{S_TMP + 3}, s{S_TMP + 3}, {F // 16}")
            k(f"s_mul_i32 s{S_TMP + 4}, s{S_CB}, 7")
            k(f"s_add_u32 s{S_TMP + 3}, s{S_TMP + 3}, s{S_TMP + 4}")
            k(f"s_lshl_b32 s{S_TMP + 3}, s{S_TMP + 3}, 10")
            st = f"v[{V_ST + 2 * i}:{V_ST + 2 * i + 1}]"
            for j in range(NT):
                a0 = acc(j, i)
                for r in range(0, 8, 2):
                    k(f"v_pk_mul_f32 v[{a0 + r}:{a0 + r + 1}], v[{a0 + r}:{a0 + r + 1}], {st} op_sel_hi:[1,0]")
                for r in range(8):
                    k(f"v_exp_f32 v{a0 + r}, v{a0 + r}")
                for r in range(0, 8, 2):
                    k(f"v_pk_fma_f32 v[{a0 + r}:{a0 + r + 1}], v[{a0 + r}:{a0 + r + 1}], {st}, {st} op_sel:[0,1,1] op_sel_hi:[1,1,1]")
                for r in range(8):
                    k(f"v_rcp_f32 v{a0 + r}, v{a0 + r}")
                for r in range(0, 8, 2):
                    k(f"v_pk_mul_f32 v[{a0 + 8 + r}:{a0 + 9 + r}], v[{a0 + r}:{a0 + r + 1}], v[{a0 + 8 + r}:{a0 + 9 + r}]")
                for q in range(4):
                    k(f"v_cvt_pk_bf16_f32 v{a0 + q}, v{a0 + 8 + 2 * q}, v{a0 + 9 + 2 * q}")
                off = j * 1024
                k(f"buffer_store_dwordx4 v[{a0}:{a0 + 3}], v{V_AO + (off >> 12)}, s[{S_O}:{S_O + 3}], s{S_TMP + 3} offen offset:{off & 4095}{SC}")
    k.stamp(7)
    k.label("done")
    k("s_endpgm")
    for l in tail_code:
        k(l)
    return k
```

```python
from gen_common import *
from engine import *
from gen_gemm import srd_lines, ln_scalars
from gen_attn2 import spin

M32 = "v_mfma_f32_32x32x16_bf16"
M16 = "v_mfma_f32_16x16x32_bf16"


def gen_mlp(name):
    NST, RL, PW, RA, NF = 16, 4, 3, 2, 7
    UPOFF = 64 * 224
    SLOT = 2 * UPOFF
    NDW = 7
    WSTEP = 64 * F * 2
    ACC = 0
    V_RB, V_AO, V_VA, V_WO, L = 224, 226, 227, 228, 235
    V_ST, TT = 236, 244
    nv = 252
    AF, WF, A_ST, A_AUG, A_XF, A_L, A_DUM = 0, 64, 92, 124, 152, 184, 216
    DL = int(os.environ.get('DL', '10'))
    RA2 = DL + 4
    k = K(name, 256, 256, 163840, nv, max(217, RA2 * 16))
    LAG = int(os.environ.get('LAG', '48'))
    S_A = [4, 8]
    S_W = 12
    S_AOFF, S_WOFF, S_WBASE, S_MASK, S_CNT, S_WAVE, S_RB, S_CB, S_MT = 16, 17, 18, 19, 20, 21, 22, 23, 24
    S_P0, S_P1, S_WS, S_P2 = 26, 28, 30, 32
    S_O, S_R, S_TMP, S_W2, S_C = 36, 40, 44, 56, 92
    S_KH, S_W2K = 55, 3
    S_RB2, S_CB2, S_W2O, S_AO2 = 52, 53, 54, 34

    def acc(jn, i):
        return ACC + (jn * 4 + i) * 4

    def areg(t, s, i):
        return AF + (((t % RA) * 2 + s) * 4 + i) * 4

    k(f"s_load_dwordx2 s[{S_P0}:{S_P0 + 1}], s[0:1], {KA_WG}")
    k(f"s_load_dwordx2 s[{S_P1}:{S_P1 + 1}], s[0:1], {KA_WU}")
    k(f"s_load_dwordx2 s[{S_WS}:{S_WS + 1}], s[0:1], {KA_WS}")
    k(f"s_load_dwordx2 s[{S_P2}:{S_P2 + 1}], s[0:1], {KA_OUT}")
    k(f"""
    s_cmp_ge_u32 s2, 256
    s_cbranch_scc1 {k.L('done')}
    v_lshrrev_b32 v{TT}, 6, v0
    v_and_b32 v{L}, 63, v0
    v_readfirstlane_b32 s{S_WAVE}, v{TT}
    s_and_b32 s{S_TMP}, s2, 7
    s_lshr_b32 s{S_TMP + 1}, s2, 3
    s_lshr_b32 s{S_RB}, s{S_TMP}, 2
    s_lshl_b32 s{S_RB}, s{S_RB}, 2
    s_lshr_b32 s{S_TMP + 2}, s{S_TMP + 1}, 3
    s_add_u32 s{S_RB}, s{S_RB}, s{S_TMP + 2}
    s_and_b32 s{S_CB}, s{S_TMP}, 3
    s_lshl_b32 s{S_CB}, s{S_CB}, 3
    s_and_b32 s{S_TMP + 3}, s{S_TMP + 1}, 7
    s_add_u32 s{S_CB}, s{S_CB}, s{S_TMP + 3}
    s_lshl_b32 s{S_MT}, s{S_RB}, 2
    s_add_u32 s{S_MT}, s{S_MT}, s{S_WAVE}
    s_lshl_b32 s{S_MT}, s{S_MT}, 1
    v_lshlrev_b32 v{V_AO}, 4, v{L}
    s_and_b32 s{S_TMP + 4}, s{S_WAVE}, 1
    s_lshl_b32 s{S_TMP + 5}, s{S_TMP + 4}, 6
    v_add_u32 v{TT}, s{S_TMP + 5}, v{L}
    s_mul_i32 s{S_TMP + 5}, s{S_CB}, 224
    v_lshlrev_b32 v{TT + 2}, 4, v{TT}
    v_add_u32 v{TT + 2}, s{S_TMP + 5}, v{TT + 2}
    v_mul_u32_u24 v{TT}, 4682, v{TT}
    """)
    for i in range(NDW):
        k(f"v_add_u32 v{TT + 1}, {128 * i * 4682}, v{TT}")
        k(f"v_lshrrev_b32 v{TT + 1}, 16, v{TT + 1}")
        k(f"v_mul_u32_u24 v{TT + 1}, {F * 2 - 224}, v{TT + 1}")
        if i:
            k(f"v_add_u32 v{TT + 2}, 2048, v{TT + 2}")
        k(f"v_add_u32 v{V_WO + i}, v{TT + 1}, v{TT + 2}")
    k(f"""
    s_lshr_b32 s{S_TMP + 5}, s{S_WAVE}, 1
    s_mul_i32 s{S_WBASE}, s{S_TMP + 5}, {UPOFF}
    s_lshl_b32 s{S_TMP + 4}, s{S_TMP + 4}, 10
    s_add_u32 s{S_WBASE}, s{S_WBASE}, s{S_TMP + 4}
    ; A voffset: (g>>1)*1024 + (g&1)*512 + m*16
    v_lshrrev_b32 v{TT}, 4, v{L}
    v_lshlrev_b32 v{TT}, 9, v{TT}
    v_and_b32 v{TT + 1}, 15, v{L}
    v_lshl_add_u32 v{V_VA}, v{TT + 1}, 4, v{TT}
    s_lshl_b32 s{S_TMP + 6}, s{S_MT}, 16
    s_add_u32 s{S_TMP + 7}, s{S_TMP + 6}, 65536
    s_mov_b32 s{S_AOFF}, 0
    s_mov_b32 s{S_WOFF}, 0
    s_waitcnt lgkmcnt(0)
    """)
    k.stamp(0)
    k(f"s_cmp_lg_u32 s{S_TMP + 5}, 0")
    k(f"s_cselect_b32 s{S_W}, s{S_P1}, s{S_P0}")
    k(f"s_cselect_b32 s{S_W + 1}, s{S_P1 + 1}, s{S_P0 + 1}")
    k(f"s_mov_b32 s{S_W + 2}, {D * F * 2}")
    k(f"s_mov_b32 s{S_W + 3}, 0x20000")

    seq = []
    stage_start = {}

    def add(t, s, jn):
        for i in range(4):
            seq.append(dict(acc=acc(jn, i), w=(t, s, jn), a=(t, s, i), zero=(t == 0 and s == 0)))

    for t in range(NST):
        stage_start[t] = len(seq)
        for s in range(2):
            for jn in range(14):
                add(t, s, jn)
    NG_ = len(seq)
    NM = 112
    pre = [[] for _ in range(NG_ + 1)]
    post = [[] for _ in range(NG_ + 1)]
    cur = {"A": 0, "W": 0}

    def step(kindc, b):
        reg, st = (S_AOFF, 4096) if kindc == "A" else (S_WOFF, WSTEP)
        if cur[kindc] == b:
            return []
        d = b - cur[kindc]
        cur[kindc] = b
        return [f"s_add_u32 s{reg}, s{reg}, {d * st}" if d > 0 else f"s_sub_u32 s{reg}, s{reg}, {-d * st}"]

    def make_vm(op):
        if op[0] == "W":
            _, b, i = op
            return VM(op, f"buffer_load_dwordx4 v{V_WO + i}, s[{S_W}:{S_W + 3}], s{S_WOFF} offen lds",
                      [f"s_add_u32 m0, s{S_WBASE}, {(b % RL) * SLOT + 2048 * i}"] + step("W", b))
        _, b, s, i = op
        r = areg(b, s, i)
        sa = S_A[i >> 1]
        return VM(op, f"buffer_load_dwordx4 a[{r}:{r + 3}], v{V_VA}, s[{sa}:{sa + 3}], s{S_AOFF} offen offset:{s * 2048 + (i & 1) * 256}", step("A", b))

    def tr_read(fslot, key, half):
        t, s, jn = key
        slot = t % RL
        off = (slot % 2) * SLOT + (jn & 1) * UPOFF + (32 * s + 8 * half) * 224 + (jn >> 1) * 32
        b = WF + fslot * 4 + 2 * half
        return f"ds_read_b64_tr_b16 a[{b}:{b + 1}], v{V_RB + slot // 2} offset:{off}"

    order, first_use, last_use, a_first, a_last = [], {}, {}, {}, {}
    for G, e in enumerate(seq):
        if "w" in e:
            if e["w"] not in first_use:
                first_use[e["w"]] = G
                order.append(e["w"])
            last_use[e["w"]] = G
            a_first.setdefault(e["a"], G)
            a_last[e["a"]] = G
    fslot = {w: q % NF for q, w in enumerate(order)}
    first_reads = []
    read_gap = {}
    for q, w in enumerate(order):
        rd = [DS(("W",) + w + (h,), tr_read(q % NF, w, h)) for h in range(2)]
        if q < NF:
            first_reads += rd
            read_gap[w] = -1
        else:
            Gr = last_use[order[q - NF]]
            post[Gr].append(rd[0])
            post[Gr + 1].append(rd[1])
            read_gap[w] = Gr
        pre[first_use[w]].append(NEEDD(("W",) + w))
    for a, G in a_first.items():
        pre[G].append(NEEDV(("A",) + a))
    bar_at = {}
    for w, g in read_gap.items():
        if w[0] > 0:
            bar_at[w[0]] = min(bar_at.get(w[0], 1 << 30), g)
    for t, g in bar_at.items():
        pre[g] = [NEEDV(("W", t, i)) for i in range(NDW)] + pre[g] + [Item("bar")]
    g01 = min(g for w, g in read_gap.items() if w[:2] == (0, 1))
    pre[g01] = [NEEDV(("W", 0, i)) for i in range(NDW)] + pre[g01] + [Item("bar")]

    ops = []
    for b in range(NST):
        for i in range(NDW):
            p = (b - PW) * NM + bar_at[1] + LAG + int((i + 0.3) * NM / NDW)
            while p % 4 != 2:
                p += 1
            ops.append((p, 1, ("W", b, i)))
        for s in range(2):
            for i in range(4):
                p = (b - RA) * NM + s * 56 + 57 + 4 * i + LAG
                ops.append((p, 0, ("A", b, s, i)))
    ops.sort()
    first = [("W", 0, 0), ("A", 0, 0, 0), ("W", 0, 1), ("A", 0, 0, 1), ("W", 0, 2), ("A", 0, 0, 2), ("W", 0, 3), ("A", 0, 0, 3)]
    second = [("W", 0, 4), ("W", 0, 5), ("W", 0, 6)] + [("A", 0, 1, i) for i in range(4)]
    queue = [(-1000, 0, o) for o in second] + [o for o in ops if o[2][1] != 0]
    sim = Sim()

    def out(items):
        for l in sim.emit(items):
            k(l)

    out([make_vm(first[0])])
    for i in range(2):
        srd(k, S_A[i], S_WS, WS_H, 65536, off_sgpr=S_TMP + 6 + i)
    out([make_vm(o) for o in first[1:]])
    for _ in range(3):
        out([make_vm(queue.pop(0)[2])])
    k(f"""
    s_mov_b32 s{S_MASK}, 0xffff0000
    v_bfe_u32 v{TT}, v{L}, 2, 3
    v_lshrrev_b32 v{TT + 1}, 5, v{L}
    v_lshl_add_u32 v{TT}, v{TT + 1}, 4, v{TT}
    v_mul_u32_u24 v{TT}, 224, v{TT}
    v_and_b32 v{TT + 1}, 3, v{L}
    v_lshl_add_u32 v{V_RB}, v{TT + 1}, 3, v{TT}
    v_add_u32 v{V_RB + 1}, {2 * SLOT}, v{V_RB}
    s_lshr_b32 s{S_RB2}, s{S_TMP}, 2
    s_lshl_b32 s{S_RB2}, s{S_RB2}, 3
    s_lshr_b32 s{S_TMP + 2}, s{S_TMP + 1}, 2
    s_add_u32 s{S_RB2}, s{S_RB2}, s{S_TMP + 2}
    s_bfe_u32 s{S_KH}, s{S_TMP}, {1 | (1 << 16)}
    s_and_b32 s{S_CB2}, s{S_TMP}, 1
    s_lshl_b32 s{S_CB2}, s{S_CB2}, 2
    s_and_b32 s{S_TMP + 3}, s{S_TMP + 1}, 3
    s_add_u32 s{S_CB2}, s{S_CB2}, s{S_TMP + 3}
    s_lshl_b32 s{S_CB2}, s{S_CB2}, 1
    s_add_u32 s{S_CB2}, s{S_CB2}, s{S_KH}
    s_mul_i32 s{S_TMP + 4}, s{S_KH}, {F * 64}
    s_lshl_b32 s{S_TMP + 3}, s{S_WAVE}, 11
    s_add_u32 s{S_TMP + 4}, s{S_TMP + 4}, s{S_TMP + 3}
    s_mul_i32 s{S_W2K}, s{S_CB2}, {F * 128}
    s_add_u32 s{S_W2K}, s{S_W2K}, s{S_TMP + 4}
    s_xor_b32 s{S_W2O}, s{S_CB2}, 1
    s_mul_i32 s{S_W2O}, s{S_W2O}, {F * 128}
    s_add_u32 s{S_W2O}, s{S_W2O}, s{S_TMP + 4}
    s_mul_i32 s{S_AO2}, s{S_MT}, {F // 16}
    s_mul_i32 s{S_TMP + 5}, s{S_CB}, 7
    s_add_u32 s{S_AO2}, s{S_AO2}, s{S_TMP + 5}
    s_lshl_b32 s{S_AO2}, s{S_AO2}, 10
    s_add_u32 s{S_AO2 + 1}, s{S_AO2}, {F // 16 * 1024}
    """)
    srd(k, S_W2, S_WS, WS_WD2, 16 * F * 128)

    def spread(G0, G1, items, per=1, ok=lambda g: True):
        g = G0
        while not ok(g):
            g += 1
        n = 0
        for it in items:
            if isinstance(it, str):
                it = T(it)
            post[g].append(it)
            if it.kind not in ("needv", "needd"):
                n += 1
            if n >= per:
                n = 0
                g += 1
                while not ok(g):
                    g += 1
                assert g <= G1, (g, G1)
        return g

    quiet = lambda g: g % 4 in (1, 2)
    it = srd_lines(S_R, S_WS, WS_ST2, 64 * 4096) + srd_lines(S_O, S_WS, WS_AUG, 32 * 3584) + [
        f"v_and_b32 v{TT}, 31, v{L}", f"v_lshlrev_b32 v{TT + 2}, 4, v{TT}", f"v_lshlrev_b32 v{TT}, 3, v{TT}",
        f"v_lshrrev_b32 v{TT + 1}, 5, v{L}", f"v_lshl_add_u32 v{TT}, v{TT + 1}, 11, v{TT}",
        f"s_lshl_b32 s{S_TMP + 2}, s{S_MT}, 12", f"s_add_u32 s{S_TMP + 3}, s{S_TMP + 2}, 4096", f"s_mul_i32 s{S_TMP + 4}, s{S_CB}, 3584"]
    spread(stage_start[3] + 40, stage_start[4], it, ok=quiet)
    it = []
    for i in range(2):
        for q in range(8):
            b = A_ST + i * 16 + q * 2
            it.append(VM(("STL", i, q), f"buffer_load_dwordx2 a[{b}:{b + 1}], v{TT}, s[{S_R}:{S_R + 3}], s{S_TMP + 2 + i} offen offset:{q * 256}"))
    for jj in range(7):
        it.append(VM(("AUG", jj), f"buffer_load_dwordx4 a[{A_AUG + 4 * jj}:{A_AUG + 4 * jj + 3}], v{TT + 2}, s[{S_O}:{S_O + 3}], s{S_TMP + 4} offen offset:{jj * 512}"))
    g = spread(stage_start[NST - 4] + 2, stage_start[NST - 3], it, ok=quiet)
    it = []
    for i in range(2):
        b = A_ST + i * 16
        e, o = V_ST + 4 * i, V_ST + 4 * i + 2
        it += [NEEDV(("STL", i, 7)), f"v_accvgpr_read_b32 v{TT}, a{b}", f"v_accvgpr_read_b32 v{TT + 1}, a{b + 1}"]
        for q in range(1, 8):
            it += [f"v_accvgpr_read_b32 v{TT + 2}, a{b + 2 * q}", f"v_accvgpr_read_b32 v{TT + 3}, a{b + 2 * q + 1}",
                   f"v_add_f32 v{TT}, v{TT}, v{TT + 2}", f"v_add_f32 v{TT + 1}, v{TT + 1}, v{TT + 3}"]
        ls = ln_scalars(TT, TT + 4, e + 1, e, TT, S_MASK, L)
        ls = ls[:[n for n, l in enumerate(ls) if l.startswith("v_cmp_gt_u32")][0]]
        it += [l for l in ls if not l.startswith("s_nop")]
        it += [f"v_mul_f32 v{e}, {f32bits(-LOG2E):#x}, v{e}",
               f"v_mov_b32 v{o + 1}, v{e + 1}", f"v_mov_b32 v{TT + 1}, v{TT}", f"v_mov_b32 v{TT + 3}, v{TT + 2}", f"v_mov_b32 v{o}, v{e}",
               f"v_lshrrev_b32 v{TT + 4}, 4, v{L}",
               f"v_permlane16_swap_b32 v{e + 1}, v{o + 1}", f"v_permlane16_swap_b32 v{TT}, v{TT + 1}", f"v_permlane16_swap_b32 v{TT + 2}, v{TT + 3}",
               f"v_permlane16_swap_b32 v{e}, v{o}"]
        for mat in range(2):
            it.append(f"v_cmp_eq_u32 vcc, {mat}, v{TT + 4}")
            for par in range(2):
                x = A_XF + mat * 16 + (2 * i + par) * 4
                it += [f"v_accvgpr_write_b32 a{x + 3}, 0", f"v_cndmask_b32 v{TT + 5}, 0, v{TT + par}, vcc", f"v_cndmask_b32 v{TT + 6}, 0, v{TT + 2 + par}, vcc",
                       f"v_accvgpr_write_b32 a{x}, v{TT + 5}", f"v_accvgpr_write_b32 a{x + 1}, v{TT + 5}", f"v_accvgpr_write_b32 a{x + 2}, v{TT + 6}"]
    spread(g + 8, NG_ - 3, it, ok=quiet)

    NS2 = 28
    hb = []
    for u in range(NS2 + DL):
        if u < NS2:
            hb.append((0, u))
        if u >= DL:
            hb.append((1, u - DL))
    hbi = {h: n for n, h in enumerate(hb)}
    phys = [114688 + 8192 * n for n in range(6)] + [8192 * n for n in range(14)]

    def w2slot(n):
        return phys[n % 20]

    def w2(n, i):
        kd, t = hb[n]
        reg = S_W2K if kd else S_W2O
        pr = []
        if i == 0:
            pr = [f"s_add_u32 m0, s{S_WBASE}, {w2slot(n)}"] + ([f"s_add_u32 s{reg}, s{reg}, 8192"] if t else [])
        return VM(("W2", n, i), f"buffer_load_dwordx4 v{V_AO}, s[{S_W2}:{S_W2 + 3}], s{reg} offen offset:{i * 1024} lds", pr)

    def epi(jj, p, packed):
        o = []
        tiles = [(acc(2 * jj, 2 * p + par), acc(2 * jj + 1, 2 * p + par), V_ST + 4 * p + 2 * par) for par in range(2)]
        for g_, u_, st in tiles:
            if packed:
                o += [f"v_pk_mul_f32 v[{g_ + r}:{g_ + r + 1}], v[{g_ + r}:{g_ + r + 1}], v[{st}:{st + 1}] op_sel_hi:[1,0]" for r in (0, 2)]
            else:
                o += [f"v_mul_f32 v{g_ + r}, v{g_ + r}, v{st}" for r in range(4)]
        for g_, u_, st in tiles:
            o += [f"v_exp_f32 v{g_ + r}, v{g_ + r}" for r in range(4)]
        for g_, u_, st in tiles:
            if packed:
                o += [f"v_pk_fma_f32 v[{g_ + r}:{g_ + r + 1}], v[{g_ + r}:{g_ + r + 1}], v[{st}:{st + 1}], v[{st}:{st + 1}] op_sel:[0,1,1] op_sel_hi:[1,1,1]" for r in (0, 2)]
            else:
                o += [f"v_fma_f32 v{g_ + r}, v{g_ + r}, v{st + 1}, v{st + 1}" for r in range(4)]
        for g_, u_, st in tiles:
            o += [f"v_rcp_f32 v{g_ + r}, v{g_ + r}" for r in range(4)]
        for g_, u_, st in tiles:
            if packed:
                o += [f"v_pk_mul_f32 v[{u_ + r}:{u_ + r + 1}], v[{g_ + r}:{g_ + r + 1}], v[{u_ + r}:{u_ + r + 1}]" for r in (0, 2)]
            else:
                o += [f"v_mul_f32 v{u_ + r}, v{g_ + r}, v{u_ + r}" for r in range(4)]
        d = tiles[0][0]
        for par in range(2):
            u_ = tiles[par][1]
            o += [f"v_cvt_pk_bf16_f32 v{d + 2 * par + q}, v{u_ + 2 * q}, v{u_ + 2 * q + 1}" for q in range(2)]
        o += ["s_nop 1", f"v_permlane16_swap_b32 v{d}, v{d + 2}", f"v_permlane16_swap_b32 v{d + 1}, v{d + 3}"]
        pr = [f"s_add_u32 s{S_AO2 + p}, s{S_AO2 + p}, 4096"] if jj == 4 else []
        o.append(VM(("ACT", jj, p), f"buffer_store_dwordx4 v[{d}:{d + 3}], v{V_AO}, s[{S_O}:{S_O + 3}], s{S_AO2 + p} offen offset:{(jj % 4) * 1024} sc1", pr))
        return o

    gt = stage_start[NST - 3]
    spread(stage_start[3] + 80, stage_start[4] - 1, code_srd(S_C, k.L("tailcode"), k.L("end")) + [f"s_lshl_b32 s{S_TMP + 5}, s{S_WAVE}, 13"], ok=quiet)
    post[stage_start[NST - 4] + 1] += [T(f"v_lshlrev_b32 v{TT + 7}, 7, v{L}"), VM(("PFC",), f"buffer_load_dword a{A_DUM}, v{TT + 7}, s[{S_C}:{S_C + 3}], s{S_TMP + 5} offen")]
    pre[gt].insert(0, T(f"{k.L('tailcode')}:"))
    spread(gt + 4, NG_, srd_lines(S_O, S_WS, WS_ACT, S * F * 2), ok=lambda g: g % 4 == 3)
    lastw = max(o[0] for o in ops if o[2][0] == "W")
    post[lastw + 1].append(T(f"s_lshl_b32 s{S_WBASE}, s{S_WAVE}, 11"))
    g = spread(lastw + 4, NG_, [w2(n, i) for n in range(6) for i in range(2)], ok=lambda g: g % 8 == 2)
    g = max(g, bar_at[NST - 1] + 2)
    g = spread(g, NG_ + 8, [w2(n, i) for n in range(6, 13) for i in range(2)], ok=lambda g: g % 8 == 2)

    out([NEEDV(("W", 0, 3)), Item("bar")])
    out(first_reads)
    k.stamp(1)

    def emit_range(G0, G1):
        lines = []
        for G in range(G0, G1):
            e = seq[G]
            lines += sim.emit(pre[G])
            d = vr(e["acc"], 4)
            lines.append(f"{M16} {d}, {vr(WF + fslot[e['w']] * 4, 4, 'a')}, {vr(areg(*e['a']), 4, 'a')}, {'0' if e['zero'] else d}")
            items = list(post[G])
            n = 0
            while queue and queue[0][0] <= G:
                if queue[0][0] < G and (n >= 1 or G % 4 != 2):
                    break
                items.append(make_vm(queue.pop(0)[2]))
                n += 1
            lines += sim.emit(items)
        return hoist_m0(lines)

    bounds = [0, stage_start[4], stage_start[8], stage_start[12], NG_]
    groups = [emit_range(bounds[i], bounds[i + 1]) for i in range(4)]
    assert not queue
    assert fold(k, groups, S_CNT)[1] == 2
    k.stamp(4)
    out(post[NG_])
    k("s_barrier")
    def aug(jj):
        return [f"{M16} {vr(acc(jn, i), 4)}, {vr(A_AUG + 4 * jj, 4, 'a')}, {vr(A_XF + (jn & 1) * 16 + 4 * i, 4, 'a')}, {vr(acc(jn, i), 4)}"
                for jn in (2 * jj, 2 * jj + 1) for i in range(4)]

    rest = [w2(n, i) for n in range(13, 20) for i in range(2)]
    mix = [NEEDV(("AUG", 6))] + [T(x) for x in aug(0)] + [rest.pop(0), rest.pop(0), T("s_nop 3")]
    for jj in range(7):
        it = epi(jj, 0, True) + epi(jj, 1, True)
        ag = aug(jj + 1) if jj < 6 else []
        for n, x in enumerate(it):
            mix.append(T(x) if isinstance(x, str) else x)
            if isinstance(x, str) and x.startswith(("v_exp", "v_rcp")) and n % 2 == 0 and ag:
                mix.append(T(ag.pop(0)))
            if n % 24 == 20 and rest:
                mix.append(rest.pop(0))
        assert not ag
    assert not rest
    out(mix)

    DACC, RX, DWF, D_X, D_P, D_RB = 0, 64, 128, 160, 176, 192
    S_FL, S_MT2 = 12, 25
    k(f"""
    s_lshl_b32 s{S_MT2}, s{S_RB2}, 2
    s_add_u32 s{S_MT2}, s{S_MT2}, s{S_WAVE}
    s_mul_i32 s{S_TMP + 4}, s{S_MT2}, {F * 64}
    s_mul_i32 s{S_TMP + 3}, s{S_KH}, {F * 32}
    s_add_u32 s{S_TMP + 4}, s{S_TMP + 4}, s{S_TMP + 3}
    s_lshl_b32 s{S_TMP + 2}, s{S_RB}, 3
    s_lshr_b32 s{S_TMP + 3}, s{S_CB}, 2
    s_add_u32 s{S_TMP + 2}, s{S_TMP + 2}, s{S_TMP + 3}
    s_lshl_b32 s{S_TMP + 2}, s{S_TMP + 2}, 7
    s_and_b32 s{S_TMP + 3}, s{S_CB}, 3
    s_lshl_b32 s{S_TMP + 3}, s{S_TMP + 3}, 2
    s_add_u32 s{S_TMP + 2}, s{S_TMP + 2}, s{S_TMP + 3}
    s_lshr_b32 s{S_TMP + 3}, s{S_RB2}, 1
    s_lshl_b32 s{S_TMP + 3}, s{S_TMP + 3}, 1
    s_add_u32 s{S_TMP + 3}, s{S_TMP + 3}, s{S_KH}
    s_lshl_b32 s{S_TMP + 3}, s{S_TMP + 3}, 9
    v_bfe_u32 v{TT}, v{L}, 2, 2
    v_lshlrev_b32 v{TT}, 7, v{TT}
    v_and_b32 v{TT + 1}, 3, v{L}
    v_lshl_add_u32 v{TT}, v{TT + 1}, 2, v{TT}
    v_mov_b32 v{TT + 2}, 0
    v_mov_b32 v{TT + 3}, 1
    v_add_u32 v{V_VA}, 4096, v{V_AO}
    """)
    srd(k, S_FL, S_WS, WS_FLG3, 256 * 128)
    srd(k, S_A[0], S_WS, WS_ACT, F * 32, off_sgpr=S_TMP + 4)
    srd(k, S_R, S_WS, WS_H, S * D * 2)
    k(f"s_lshl_b32 s{S_TMP + 5}, s{S_MT2}, 16")
    k(f"s_lshl_b32 s{S_TMP + 6}, s{S_CB2}, 12")
    k(f"s_add_u32 s{S_TMP + 6}, s{S_TMP + 6}, s{S_TMP + 5}")
    k("s_waitcnt vmcnt(0)")
    k("s_barrier")
    k(f"s_cmp_lg_u32 s{S_WAVE}, 0")
    k(f"s_cbranch_scc1 {k.L('noflag')}")
    k("s_mov_b64 exec, 1")
    k(f"buffer_store_dword v{TT + 3}, v{TT + 2}, s[{S_FL}:{S_FL + 3}], s{S_TMP + 2} offen sc1")
    k("s_mov_b64 exec, -1")
    k.label("noflag")
    k.stamp(5)
    k(f"s_cmp_lg_u32 s{S_WAVE}, 1")
    k(f"s_cbranch_scc1 {k.L('spin_ok')}")
    pl_ = [f"buffer_load_dword v{TT + 4}, v{TT}, s[{S_FL}:{S_FL + 3}], s{S_TMP + 3} offen sc1"]
    for l in pl_ + spin(k, "spin", pl_, [f"v_cmp_eq_u32 vcc, 1, v{TT + 4}", "s_nop 1", "s_cmp_eq_u64 vcc, -1"], S_TMP + 7):
        k(l)
    sim = Sim()
    k(f"""
    v_bfe_u32 v{TT + 5}, v{L}, 2, 2
    v_lshrrev_b32 v{TT + 6}, 5, v{L}
    v_lshl_add_u32 v{TT + 5}, v{TT + 6}, 3, v{TT + 5}
    v_lshlrev_b32 v{TT + 5}, 7, v{TT + 5}
    v_and_b32 v{TT + 6}, 3, v{L}
    v_lshl_add_u32 v{TT + 5}, v{TT + 6}, 3, v{TT + 5}
    v_bfe_u32 v{TT + 6}, v{L}, 4, 1
    v_lshl_add_u32 v{TT + 5}, v{TT + 6}, 5, v{TT + 5}
    v_bfe_u32 v{TT + 6}, v{L}, 3, 1
    v_lshl_add_u32 v{D_RB}, v{TT + 6}, 6, v{TT + 5}
    v_xor_b32 v{D_RB + 1}, 64, v{D_RB}
    v_add_u32 v{D_RB + 2}, 65536, v{D_RB}
    v_add_u32 v{D_RB + 3}, 65536, v{D_RB + 1}
    v_add_u32 v{D_RB + 4}, 114688, v{D_RB}
    v_add_u32 v{D_RB + 5}, 114688, v{D_RB + 1}
    s_mov_b32 s{S_AOFF}, 0
    """)
    out([VM(("X", b), f"buffer_load_dwordx4 v[{D_X + 4 * b}:{D_X + 4 * b + 3}], v{V_AO}, s[{S_R}:{S_R + 3}], s{S_TMP + 6} offen offset:{b * 1024}") for b in range(4)])
    NF2 = 8
    sq = []
    step_start = {}
    for u in range(NS2 + DL):
        step_start[u] = len(sq)
        for ss in range(4):
            if u < NS2:
                sq += [(0, u, ss, 0), (0, u, ss, 1)]
            if u >= DL:
                sq += [(1, u - DL, ss, 0), (1, u - DL, ss, 1)]
    NG2 = len(sq)
    step_start[NS2 + DL] = NG2
    pre2 = [[] for _ in range(NG2)]
    post2 = [[] for _ in range(NG2)]

    def d_read(q):
        kd, t, ss, j = sq[q]
        a = w2slot(hbi[(kd, t)])
        grp, base = (2, 114688) if a >= 114688 else (a // 65536, a // 65536 * 65536)
        b = DWF + (q % NF2) * 4
        return [DS(("W", q, h), f"ds_read_b64_tr_b16 v[{b + 2 * h}:{b + 2 * h + 1}], v{D_RB + 2 * grp + j} offset:{a - base + (ss * 16 + 4 * h) * 128}") for h in range(2)]

    def afr(f):
        return (f % (RA2 * 4)) * 4

    def d_aload(f):
        pr = [f"s_add_u32 s{S_AOFF}, s{S_AOFF}, 4096"] if f and f % 4 == 0 else []
        b = afr(f)
        return VM(("A", f), f"buffer_load_dwordx4 a[{b}:{b + 3}], v{V_AO}, s[{S_A[0]}:{S_A[0] + 3}], s{S_AOFF} offen offset:{(f % 4) * 1024} sc1", pr)

    first_read = {}
    last_mf = {}
    for q, (kd, t, ss, j) in enumerate(sq):
        first_read.setdefault(hbi[(kd, t)], q - NF2)
        last_mf[hbi[(kd, t)]] = q
        if q >= NF2:
            post2[q - NF2] += d_read(q)
        if j == 0:
            pre2[q] += ([NEEDV(("A", t * 4 + ss))] if kd == 0 else []) + [NEEDD(("W", q)), NEEDD(("W", q + 1))]
    nhb = len(hb)
    bars = [step_start[u] for u in range(2, NS2 + DL, 2)]
    issue_bar, pub_bar = {}, {}
    for n in range(20, nhb):
        issue_bar[n] = min(b for b in bars if b > last_mf[n - 20])
        pub_bar[n] = max(b for b in bars if b <= first_read[n])
        assert issue_bar[n] < pub_bar[n]
    used = sorted(set(issue_bar.values()) | set(pub_bar.values()))
    for b in used:
        pre2[b] = [NEEDV(("W2", n, 1)) for n in pub_bar if pub_bar[n] == b] + pre2[b] + [Item("bar")]
    vmq = []
    for f in range(16, 4 * NS2):
        t, ss = f // 4, f % 4
        g = sq.index((0, t - 4, ss, 1))
        if t - RA2 >= 0:
            g = max(g, sq.index((1, t - RA2, ss, 1)))
        vmq.append((g, 0, ("A", f)))
    g = 0
    for n in range(20, nhb):
        g = max(g + 8, issue_bar[n] + 1, first_read[n] - int(os.environ.get('WLA', '9')) * 16)
        vmq += [(g, 1, ("W2", n, 0)), (g + 3, 1, ("W2", n, 1))]
        assert g + 3 < pub_bar[n] - 24, (n, g, pub_bar[n])
    vmq.sort()
    for g, _, op in vmq:
        post2[g].append(d_aload(op[1]) if op[0] == "A" else w2(op[1], op[2]))
    gx = step_start[NS2]
    xs = srd_lines(S_R, S_WS, WS_XCH, 8 * MB) + [f"s_lshl_b32 s{S_TMP + 2}, s2, 15", f"s_lshl_b32 s{S_TMP + 4}, s{S_WAVE}, 13",
                                                f"s_add_u32 s{S_TMP + 2}, s{S_TMP + 2}, s{S_TMP + 4}", f"s_xor_b32 s{S_TMP + 6}, s{S_TMP + 2}, 65536"]
    for n, l in enumerate(xs):
        post2[gx - 12 + n].append(T(l))
    for q in range(8):
        post2[gx + 3 + q].append(VM(("XS", q), f"buffer_store_dwordx4 v[{DACC + 32 + 4 * q}:{DACC + 35 + 4 * q}], v{V_VA if q >= 4 else V_AO}, s[{S_R}:{S_R + 3}], s{S_TMP + 2} offen offset:{(q % 4) * 1024} sc1"))
    rx = [f"buffer_load_dwordx4 v[{RX + 4 * q}:{RX + 3 + 4 * q}], v{V_VA if q >= 4 else V_AO}, s[{S_R}:{S_R + 3}], s{S_TMP + 6} offen offset:{(q % 4) * 1024} sc1" for q in range(8)]
    RXB = int(os.environ.get("RXB", "24"))
    for q in range(8):
        post2[NG2 - RXB + q].append(VM(("XR", q), rx[q]))

    it = []
    for q in range(NF2):
        it += d_read(q)
    out(it)
    k("s_barrier")
    k.stamp(6)
    out([d_aload(f) for f in range(16)])
    for q, (kd, t, ss, j) in enumerate(sq):
        out(pre2[q])
        a_ = vr(DACC + (32 if kd == 0 else 0) + 16 * j, 16)
        k(f"{M32} {a_}, {vr(DWF + (q % NF2) * 4, 4)}, {vr(afr(t * 4 + ss), 4, 'a')}, {'0' if t == 0 and ss == 0 else a_}")
        out(post2[q])
    k.stamp(7)
    srd(k, S_O, S_P2, 0, S * D * 2)
    k(f"v_and_b32 v{TT + 4}, 31, v{L}")
    k(f"v_lshlrev_b32 v{TT + 4}, 11, v{TT + 4}")
    k(f"v_lshrrev_b32 v{TT + 1}, 5, v{L}")
    k(f"v_lshl_add_u32 v{TT + 4}, v{TT + 1}, 4, v{TT + 4}")
    k(f"s_lshl_b32 s{S_TMP + 4}, s{S_CB2}, 7")
    k(f"s_add_u32 s{S_TMP + 3}, s{S_TMP + 5}, s{S_TMP + 4}")
    k("s_nop 1")
    for q in range(16):
        k(f"v_lshlrev_b32 v{TT + 2}, 16, v{D_X + q}")
        k(f"v_and_b32 v{TT + 3}, s{S_MASK}, v{D_X + q}")
        k(f"v_pk_add_f32 v[{DACC + 2 * q}:{DACC + 2 * q + 1}], v[{DACC + 2 * q}:{DACC + 2 * q + 1}], v[{TT + 2}:{TT + 3}]")
    chk = [f"v_max3_u32 v{TT}, v{RX}, v{RX + 1}, v{RX + 2}"] + [f"v_max3_u32 v{TT}, v{TT}, v{RX + r}, v{RX + r + 1}" for r in range(3, 31, 2)] + \
          [f"v_max_u32 v{TT}, v{TT}, v{RX + 31}", f"v_cmp_eq_u32 vcc, -1, v{TT}", "s_nop 1", "s_cmp_eq_u64 vcc, 0"]
    for l in spin(k, "xspin", rx, chk, S_TMP + 7):
        k(l)
    for j in range(2):
        a0 = DACC + 16 * j
        for blk in range(2):
            pb = D_P + (j * 2 + blk) * 4
            for q in range(4):
                r0, r1 = a0 + blk * 8 + 2 * q, a0 + blk * 8 + 2 * q + 1
                k(f"v_pk_add_f32 v[{r0}:{r1}], v[{r0}:{r1}], v[{RX + r0 - DACC}:{RX + r1 - DACC}]")
                k(f"v_cvt_pk_bf16_f32 v{pb + q}, v{r0}, v{r1}")
            k("s_nop 1")
            k(f"v_permlane32_swap_b32 v{pb}, v{pb + 2}")
            k(f"v_permlane32_swap_b32 v{pb + 1}, v{pb + 3}")
            k(f"buffer_store_dwordx4 v[{pb}:{pb + 3}], v{TT + 4}, s[{S_O}:{S_O + 3}], s{S_TMP + 3} offen offset:{j * 64 + blk * 32}")
    k.label("done")
    k("s_endpgm")
    return k
```

```python
from gen_common import *
from engine import *
from gen_gemm import cs_split, srd_lines

M32 = "v_mfma_f32_32x32x16_bf16"
M16 = "v_mfma_f32_16x16x32_bf16"


def spin(k, lbl, loads, cmp_lines, cnt):
    return ([f"s_mov_b32 s{cnt}, 0x8000", f"{k.L(lbl)}:", "s_waitcnt vmcnt(0)"] + cmp_lines +
            [f"s_cbranch_scc1 {k.L(lbl + '_ok')}", "s_sleep 2"] + loads +
            [f"s_sub_u32 s{cnt}, s{cnt}, 1", f"s_cmp_lg_u32 s{cnt}, 0", f"s_cbranch_scc1 {k.L(lbl)}", f"{k.L(lbl + '_ok')}:"])


def gen_attn(name, nk=None, nk_end=None):
    RL = 4
    SLOT = 16384
    WOB = 65536
    k = K(name, 256, 576, 163840, 160)
    S0, S1, O, NEGM, P, LL, Q, KF, VF, SEL = 16, 32, 48, 64, 80, 88, 92, 100, 108, 116
    SB = [S0, S1]
    V_LANE, V_RB, V_CUR, V_NXT, T = 1, 3, 4, 5, 8
    S_WS, S_KS, S_VS, S_QS, S_OS = 4, 8, 12, 16, 20
    S_WAVE, S_HEAD, S_QT, S_OFF, S_MASK, S_RSLOT, S_CNT, S_RB, S_T = 24, 25, 26, 27, 28, 29, 30, 31, 32
    S_PF, S_XCD, S_IDX, S_CB = 40, 47, 48, 49
    S_WG, S_WU, S_WD, S_WO, S_X = 52, 54, 56, 58, 50
    k(f"""
    s_load_dwordx2 s[{S_WS}:{S_WS + 1}], s[0:1], {KA_WS}
    s_load_dwordx4 s[{S_WG}:{S_WG + 3}], s[0:1], {KA_WG}
    s_load_dwordx2 s[{S_WD}:{S_WD + 1}], s[0:1], {KA_WD}
    s_load_dwordx2 s[{S_WO}:{S_WO + 1}], s[0:1], {KA_WO}
    s_load_dwordx2 s[{S_X}:{S_X + 1}], s[0:1], {KA_X}
    s_cmp_ge_u32 s2, 256
    s_cbranch_scc1 {k.L('done')}
    v_lshrrev_b32 v{T}, 6, v0
    v_and_b32 v{V_LANE}, 63, v0
    v_readfirstlane_b32 s{S_WAVE}, v{T}
    s_and_b32 s{S_XCD}, s2, 7
    s_lshr_b32 s{S_IDX}, s2, 3
    s_lshl_b32 s{S_HEAD}, s{S_XCD}, 2
    s_lshr_b32 s{S_T + 2}, s{S_IDX}, 3
    s_add_u32 s{S_HEAD}, s{S_HEAD}, s{S_T + 2}
    s_and_b32 s{S_T + 4}, s{S_IDX}, 7
    s_lshl_b32 s{S_QT}, s{S_T + 4}, 3
    s_add_u32 s{S_QT}, s{S_QT}, s{S_WAVE}             ; q tile
    v_lshlrev_b32 v{V_RB}, 4, v{V_LANE}               ; lane*16
    s_lshl_b32 s{S_T + 3}, s{S_HEAD}, 17
    s_lshr_b32 s{S_RB}, s{S_XCD}, 1
    s_lshl_b32 s{S_RB}, s{S_RB}, 2
    s_add_u32 s{S_RB}, s{S_RB}, s{S_T + 2}
    s_and_b32 s{S_CB}, s{S_XCD}, 1
    s_lshl_b32 s{S_CB}, s{S_CB}, 3
    s_add_u32 s{S_CB}, s{S_CB}, s{S_T + 4}
    s_mov_b32 s{S_MASK}, 0xffff0000
    s_waitcnt lgkmcnt(0)
    """)
    k.stamp(0)
    srd(k, S_KS, S_WS, WS_K, 131072, off_sgpr=S_T + 3)
    srd(k, S_VS, S_WS, WS_V, 131072, off_sgpr=S_T + 3)
    k(f"s_cmp_eq_u32 s{S_WAVE}, 8")
    k(f"s_cbranch_scc1 {k.L('loader')}")
    k(f"s_lshl_b32 s{S_OFF}, s{S_WAVE}, 10")
    k(f"s_mov_b32 m0, s{S_OFF}")
    k("s_nop 0")
    k(f"buffer_load_dwordx4 v{V_RB}, s[{S_KS}:{S_KS + 3}], s{S_OFF} offen lds")
    srd(k, S_QS, S_WS, WS_Q, 131072, off_sgpr=S_T + 3)
    k(f"s_lshl_b32 s{S_T + 4}, s{S_QT}, 11")
    k(f"buffer_load_dwordx4 v[{Q}:{Q + 3}], v{V_RB}, s[{S_QS}:{S_QS + 3}], s{S_T + 4} offen")
    k(f"buffer_load_dwordx4 v[{Q + 4}:{Q + 7}], v{V_RB}, s[{S_QS}:{S_QS + 3}], s{S_T + 4} offen offset:1024")
    k(f"s_add_u32 m0, s{S_OFF}, 8192")
    k("s_nop 0")
    k(f"buffer_load_dwordx4 v{V_RB}, s[{S_VS}:{S_VS + 3}], s{S_OFF} offen lds")
    k(f"s_add_u32 m0, s{S_OFF}, {SLOT}")
    k(f"s_add_u32 s{S_T + 5}, s{S_OFF}, 8192")
    k(f"buffer_load_dwordx4 v{V_RB}, s[{S_KS}:{S_KS + 3}], s{S_T + 5} offen lds")
    k(f"s_add_u32 m0, s{S_OFF}, {SLOT + 8192}")
    k("s_nop 0")
    k(f"buffer_load_dwordx4 v{V_RB}, s[{S_VS}:{S_VS + 3}], s{S_T + 5} offen lds")
    k(f"""
    v_lshrrev_b32 v{T}, 4, v{V_LANE}
    v_lshrrev_b32 v{T + 1}, 2, v{V_LANE}
    v_xor_b32 v{T}, v{T}, v{T + 1}
    v_and_b32 v{T}, 1, v{T}
    v_mov_b32 v{T + 1}, 0x3f803f80
    v_cmp_eq_u32 vcc, 0, v{T}
    s_mov_b32 s{S_RSLOT}, 0
    s_mov_b32 s{S_CNT}, 8
    """)
    for d in range(4):
        k(f"v_cndmask_b32 v{SEL + d}, 0, v{T + 1}, vcc")
        k(f"v_mov_b32 v{LL + d}, 0")
    for r in range(16):
        k(f"v_mov_b32 v{O + r}, 0")
    for r in range(4, 8):
        k(f"v_mov_b32 v{P + r}, 0")
    k(f"v_mov_b32 v{V_CUR}, v{V_RB}")
    k(f"s_waitcnt vmcnt(2)")
    k("s_barrier")
    k.stamp(1)
    k(f"ds_read_b128 v[{KF}:{KF + 3}], v{V_CUR}")
    k(f"ds_read_b128 v[{KF + 4}:{KF + 7}], v{V_CUR} offset:1024")
    k("s_waitcnt lgkmcnt(1)")
    k(f"{M32} {vr(S0, 16)}, {vr(KF, 4)}, {vr(Q, 4)}, 0")
    k("s_waitcnt lgkmcnt(0)")
    k(f"{M32} {vr(S0, 16)}, {vr(KF + 4, 4)}, {vr(Q + 4, 4)}, {vr(S0, 16)}")
    k(f"ds_read_b128 v[{KF}:{KF + 3}], v{V_CUR} offset:2048")
    k(f"ds_read_b128 v[{VF + 4}:{VF + 7}], v{V_CUR} offset:{8192 + 1024}")
    k(f"ds_read_b128 v[{KF + 4}:{KF + 7}], v{V_CUR} offset:{2048 + 1024}")
    k(f"ds_read_b128 v[{VF}:{VF + 3}], v{V_CUR} offset:8192")
    k("s_nop 7")
    k(f"v_max3_f32 v{T}, v{S0}, v{S0 + 1}, v{S0 + 2}")
    k(f"v_max3_f32 v{T + 1}, v{S0 + 3}, v{S0 + 4}, v{S0 + 5}")
    for r in range(6, 16, 4):
        k(f"v_max3_f32 v{T}, v{T}, v{S0 + r}, v{S0 + r + 1}")
        if r + 3 < 16:
            k(f"v_max3_f32 v{T + 1}, v{T + 1}, v{S0 + r + 2}, v{S0 + r + 3}")
    k(f"v_max_f32 v{T}, v{T}, v{T + 1}")
    k(f"v_mov_b32 v{T + 1}, v{T}")
    k("s_nop 1")
    k(f"v_permlane32_swap_b32 v{T}, v{T + 1}")
    k("s_nop 1")
    k(f"v_max_f32 v{T}, v{T}, v{T + 1}")
    k(f"v_sub_f32 v{T}, 0, v{T}")
    k(f"v_mov_b32 v{T + 1}, v{T}")
    for r in range(0, 16, 2):
        k(f"v_pk_add_f32 v[{S0 + r}:{S0 + r + 1}], v[{S0 + r}:{S0 + r + 1}], v[{T}:{T + 1}]")
        k(f"v_pk_mov_b32 v[{NEGM + r}:{NEGM + r + 1}], v[{T}:{T + 1}], v[{T}:{T + 1}]")

    def ex(b, r0, n):
        for r in range(r0, r0 + n):
            k(f"v_exp_f32 v{b + r}, v{b + r}")

    def cv(b, q0, n):
        for q in range(q0, q0 + n):
            k(f"v_cvt_pk_bf16_f32 v{P + q}, v{b + 2 * q}, v{b + 2 * q + 1}")

    k.stamp(2)
    k.label("loop")
    for st in range(2):
        cur, nxt = (V_CUR, V_NXT) if st == 0 else (V_NXT, V_CUR)
        for tt in range(4):
            cb, nb = SB[tt % 2], SB[(tt + 1) % 2]
            if tt == 2:
                if st == 0:
                    k("s_waitcnt vmcnt(0)")
                k("s_barrier")

            def kaddr(dt, half):
                t2 = tt + dt
                return (cur, t2 * 2048 + half * 1024) if t2 < 4 else (nxt, (t2 - 4) * 2048 + half * 1024)

            k(f"s_setprio {3 - (tt + 2) % 4}  ; PRIO")
            k("s_waitcnt lgkmcnt(2)")
            k(f"{M32} {vr(nb, 16)}, {vr(KF, 4)}, {vr(Q, 4)}, {vr(NEGM, 16)}")
            a, o = kaddr(2, 0)
            k(f"ds_read_b128 v[{KF}:{KF + 3}], v{a} offset:{o}")
            ex(cb, 0, 4)
            k(f"{M32} {vr(O, 16)}, {vr(VF + 4, 4)}, {vr(P + 4, 4)}, {vr(O, 16)}")
            a, o = kaddr(0, 1)
            k(f"ds_read_b128 v[{VF + 4}:{VF + 7}], v{a} offset:{o + 8192}")
            ex(cb, 4, 3)
            cv(cb, 0, 2)
            k(f"{M16} {vr(LL, 4)}, {vr(SEL, 4)}, {vr(P + 4, 4)}, {vr(LL, 4)}")
            ex(cb, 7, 2)
            k("s_waitcnt lgkmcnt(2)")
            k(f"{M32} {vr(nb, 16)}, {vr(KF + 4, 4)}, {vr(Q + 4, 4)}, {vr(nb, 16)}")
            a, o = kaddr(2, 1)
            k(f"ds_read_b128 v[{KF + 4}:{KF + 7}], v{a} offset:{o}")
            cv(cb, 2, 2)
            if tt == 1:
                k(f"s_add_u32 s{S_RSLOT}, s{S_RSLOT}, {SLOT}")
                k(f"s_and_b32 s{S_RSLOT}, s{S_RSLOT}, {RL * SLOT - 1}")
                k(f"v_add_u32 v{nxt}, s{S_RSLOT}, v{V_RB}")
            ex(cb, 9, 3)
            k(f"{M32} {vr(O, 16)}, {vr(VF, 4)}, {vr(P, 4)}, {vr(O, 16)}")
            a, o = kaddr(1, 0)
            k(f"ds_read_b128 v[{VF}:{VF + 3}], v{a} offset:{o + 8192}")
            ex(cb, 12, 4)
            k(f"{M16} {vr(LL, 4)}, {vr(SEL, 4)}, {vr(P, 4)}, {vr(LL, 4)}")
            if tt == 3 and st == 1:
                k(f"s_sub_u32 s{S_CNT}, s{S_CNT}, 1")
                k(f"s_cmp_lg_u32 s{S_CNT}, 0")
            cv(cb, 4, 4)
    k(f"s_cbranch_scc1 {k.L('loop')}")
    k.stamp(3)
    k("s_waitcnt lgkmcnt(0)")
    k("s_nop 0")
    k(f"{M32} {vr(O, 16)}, {vr(VF + 4, 4)}, {vr(P + 4, 4)}, {vr(O, 16)}")
    k(f"{M16} {vr(LL, 4)}, {vr(SEL, 4)}, {vr(P + 4, 4)}, {vr(LL, 4)}")
    srd(k, S_OS, S_WS, WS_O, S * D * 2)
    k(f"s_lshl_b32 s{S_T}, s{S_QT}, 16")
    k(f"s_lshl_b32 s{S_T + 1}, s{S_HEAD}, 11")
    k(f"s_add_u32 s{S_T}, s{S_T}, s{S_T + 1}")
    k.label("finish")
    k("s_nop 7")
    k(f"v_rcp_f32 v{T}, v{LL}")
    k(f"v_mov_b32 v{T + 1}, 0x5f800000")
    k("s_nop 3")
    for r in range(0, 16, 2):
        k(f"v_pk_mul_f32 v[{S1 + r}:{S1 + r + 1}], v[{O + r}:{O + r + 1}], v[{T}:{T + 1}] op_sel_hi:[1,0]")
    k(f"v_mov_b32 v{T + 2}, v{LL}")
    k(f"v_mov_b32 v{T + 3}, 0")
    for r in range(0, 16, 2):
        k(f"v_pk_fma_f32 v[{T + 2}:{T + 3}], v[{S1 + r}:{S1 + r + 1}], 0, v[{T + 2}:{T + 3}] op_sel_hi:[1,0,1]")
    k(f"v_add_f32 v{T + 2}, v{T + 2}, v{T + 3}")
    for q in range(8):
        k(f"v_cvt_pk_bf16_f32 v{P + q}, v{S1 + 2 * q}, v{S1 + 2 * q + 1}")
    k(f"v_cmp_nlt_f32 vcc, v{T + 2}, v{T + 1}")
    k(f"s_cmp_lg_u32 s{S_CNT}, 0")
    k(f"s_cbranch_scc1 {k.L('store')}")
    k(f"s_cbranch_vccnz {k.L('slow')}")
    k.label("store")
    k(f"buffer_store_dwordx4 v[{P}:{P + 3}], v{V_RB}, s[{S_OS}:{S_OS + 3}], s{S_T} offen sc1")
    k(f"buffer_store_dwordx4 v[{P + 4}:{P + 7}], v{V_RB}, s[{S_OS}:{S_OS + 3}], s{S_T} offen offset:1024 sc1")

    ACC, AFR, WF, V_X, V_CS = 16, 48, 112, 144, 152
    V_WB = 4
    V_A1 = 2
    S_KH, S_MT, S_A, S_R, S_H = 44, 45, 8, 12, 16
    L = V_LANE
    k(f"""
    s_lshr_b32 s{S_KH}, s{S_WAVE}, 2
    s_and_b32 s{S_MT}, s{S_WAVE}, 3
    s_lshl_b32 s{S_T + 2}, s{S_RB}, 2
    s_add_u32 s{S_MT}, s{S_MT}, s{S_T + 2}
    v_bfe_u32 v{T}, v{L}, 2, 2
    v_lshrrev_b32 v{T + 1}, 5, v{L}
    v_lshl_add_u32 v{T + 3}, v{T + 1}, 2, v{T}
    v_lshlrev_b32 v{T + 3}, 7, v{T + 3}
    v_and_b32 v{T + 2}, 3, v{L}
    v_lshl_add_u32 v{T + 3}, v{T + 2}, 3, v{T + 3}
    v_bfe_u32 v{T + 2}, v{L}, 4, 1
    v_lshl_add_u32 v{T + 3}, v{T + 2}, 5, v{T + 3}
    v_bfe_u32 v{T + 2}, v{L}, 3, 1
    v_lshl_add_u32 v{T + 3}, v{T + 2}, 6, v{T + 3}
    s_lshl_b32 s{S_T + 2}, s{S_KH}, 6
    v_xor_b32 v{T + 3}, s{S_T + 2}, v{T + 3}
    s_lshl_b32 s{S_T + 2}, s{S_KH}, 16
    s_add_u32 s{S_T + 2}, s{S_T + 2}, {WOB}
    s_cmp_eq_u32 s{S_KH}, 0
    s_cselect_b32 s{S_T + 3}, {WOB + 32768}, 0
    v_add_u32 v{V_WB}, s{S_T + 2}, v{T + 3}
    v_xor_b32 v{V_WB + 1}, 64, v{V_WB}
    v_add_u32 v{V_WB + 2}, s{S_T + 3}, v{T + 3}
    v_xor_b32 v{V_WB + 3}, 64, v{V_WB + 2}
    s_lshl_b32 s{S_T + 4}, s{S_MT}, 16
    s_lshl_b32 s{S_OFF}, s{S_XCD}, 2
    s_add_u32 s{S_OFF}, s{S_OFF}, s{S_KH}
    s_add_u32 s{S_OFF}, s{S_OFF}, 4
    s_lshl_b32 s{S_OFF}, s{S_OFF}, 11
    s_and_b32 s{S_OFF}, s{S_OFF}, 0xffff
    v_and_b32 v{T}, 31, v{L}
    v_lshlrev_b32 v{T}, 11, v{T}
    v_lshl_add_u32 v{T}, v{T + 1}, 4, v{T}
    s_lshl_b32 s{S_T + 6}, s{S_CB}, 7
    s_add_u32 s{S_T + 6}, s{S_T + 6}, s{S_T + 4}
    s_lshl_b32 s{S_T + 7}, s{S_KH}, 6
    s_add_u32 s{S_T + 6}, s{S_T + 6}, s{S_T + 7}
    """)
    srd(k, S_A, S_WS, WS_O, 65536, off_sgpr=S_T + 4)
    srd(k, S_R, S_X, 0, S * D * 2)
    k("s_waitcnt vmcnt(0)")
    k("s_barrier")
    k.stamp(4)
    sim = Sim()

    def out(items):
        for l in sim.emit(items):
            k(l)

    out([VM(("X", b), f"buffer_load_dwordx4 v[{V_X + 4 * b}:{V_X + 4 * b + 3}], v{T}, s[{S_R}:{S_R + 3}], s{S_T + 6} offen offset:{b * 32}") for b in range(2)])
    k("s_barrier")
    k.stamp(5)

    def a_load(f):
        pre = [f"s_add_u32 s{S_OFF}, s{S_OFF}, 4096", f"s_and_b32 s{S_OFF}, s{S_OFF}, 0xffff"] if f and f % 2 == 0 else []
        b = AFR + (f % 16) * 4
        return VM(("A", f), f"buffer_load_dwordx4 v[{b}:{b + 3}], v{V_RB}, s[{S_A}:{S_A + 3}], s{S_OFF} offen offset:{(f % 2) * 1024} sc1", pre)

    def w_read(q):
        f, j = q // 2, q % 2
        b = WF + (q % 8) * 4
        return [DS(("W", q, h), f"ds_read_b64_tr_b16 v[{b + 2 * h}:{b + 2 * h + 1}], v{V_WB + (f // 16) * 2 + j} offset:{(f % 16) * 2048 + h * 1024}") for h in range(2)]

    out([a_load(f) for f in range(8)])
    it = []
    for q in range(8):
        it += w_read(q)
    out(it)
    out([a_load(f) for f in range(8, 16)])
    for q in range(64):
        f, j = q // 2, q % 2
        nd = [NEEDV(("A", f)), NEEDD(("W", q)), NEEDD(("W", q + 1))] if j == 0 else []
        out(nd)
        acc = vr(ACC + 16 * j, 16)
        k(f"{M32} {acc}, {vr(WF + (q % 8) * 4, 4)}, {vr(AFR + (f % 16) * 4, 4)}, {'0' if f == 0 else acc}")
        it = w_read(q + 8) if q + 8 < 64 else []
        if j == 1 and f + 16 < 28:
            it.append(a_load(f + 16))
        if q == 33:
            it.append(Item("bar"))
            it += [a_load(f2) for f2 in range(28, 32)]
        out(it)
        if q == 33:
            k.stamp(6)
    k.stamp(7)
    k(f"s_lshl_b32 s{S_T}, s{S_WAVE}, 12")
    k(f"s_add_u32 s{S_T}, s{S_T}, 32768")
    k(f"v_add_u32 v{T + 5}, s{S_T}, v{V_RB}")
    k(f"v_xor_b32 v{T + 6}, 16384, v{T + 5}")
    for b in range(2):
        k(f"v_permlane32_swap_b32 v{V_X + 4 * b}, v{V_X + 4 * b + 2}")
        k(f"v_permlane32_swap_b32 v{V_X + 4 * b + 1}, v{V_X + 4 * b + 3}")
    srd(k, S_R, S_WS, WS_H, S * D * 2)
    for q in range(4):
        k(f"ds_write_b128 v{T + 5}, v[{ACC + 16 + 4 * q}:{ACC + 19 + 4 * q}] offset:{q * 1024}")
    XU = AFR
    for q in range(8):
        k(f"v_lshlrev_b32 v{XU}, 16, v{V_X + q}")
        k(f"v_and_b32 v{XU + 1}, s{S_MASK}, v{V_X + q}")
        k(f"v_pk_add_f32 v[{ACC + 2 * q}:{ACC + 2 * q + 1}], v[{ACC + 2 * q}:{ACC + 2 * q + 1}], v[{XU}:{XU + 1}]")
    k("s_waitcnt lgkmcnt(0)")
    k("s_barrier")
    PT = AFR + 16
    for q in range(4):
        k(f"ds_read_b128 v[{PT + 4 * q}:{PT + 3 + 4 * q}], v{T + 6} offset:{q * 1024}")
    k(f"s_lshl_b32 s{S_T + 5}, s{S_CB}, 12")
    k(f"s_add_u32 s{S_T + 5}, s{S_T + 5}, s{S_T + 4}")
    k(f"s_lshl_b32 s{S_T + 6}, s{S_KH}, 11")
    k(f"s_add_u32 s{S_T + 5}, s{S_T + 5}, s{S_T + 6}")
    ST = AFR + 4
    for r in range(4):
        k(f"v_mov_b32 v{ST + r}, 0")
    PK = AFR + 8
    for blk in range(2):
        k(f"s_waitcnt lgkmcnt({2 - 2 * blk})")
        for q in range(4 * blk, 4 * blk + 4):
            k(f"v_pk_add_f32 v[{ACC + 2 * q}:{ACC + 2 * q + 1}], v[{ACC + 2 * q}:{ACC + 2 * q + 1}], v[{PT + 2 * q}:{PT + 2 * q + 1}]")
            k(f"v_cvt_pk_bf16_f32 v{PK + q}, v{ACC + 2 * q}, v{ACC + 2 * q + 1}")
        k(f"buffer_store_dwordx4 v[{PK + 4 * blk}:{PK + 4 * blk + 3}], v{V_RB}, s[{S_R}:{S_R + 3}], s{S_T + 5} offen offset:{blk * 1024} sc1")
    for q in range(8):
        k(f"v_lshlrev_b32 v{XU}, 16, v{PK + q}")
        k(f"v_and_b32 v{XU + 1}, s{S_MASK}, v{PK + q}")
        k(f"v_pk_add_f32 v[{ST}:{ST + 1}], v[{ST}:{ST + 1}], v[{XU}:{XU + 1}]")
        k(f"v_pk_fma_f32 v[{ST + 2}:{ST + 3}], v[{XU}:{XU + 1}], v[{XU}:{XU + 1}], v[{ST + 2}:{ST + 3}]")
    k(f"v_add_f32 v{ST}, v{ST}, v{ST + 1}")
    k(f"v_add_f32 v{ST + 1}, v{ST + 2}, v{ST + 3}")
    k(f"s_lshl_b32 s{S_T}, s{S_WAVE}, 9")
    k(f"v_lshlrev_b32 v{T + 5}, 3, v{L}")
    k(f"v_add_u32 v{T + 6}, s{S_T}, v{T + 5}")
    k(f"ds_write_b64 v{T + 6}, v[{ST}:{ST + 1}]")
    k("s_waitcnt lgkmcnt(0)")
    k("s_barrier")
    k(f"s_cmp_ge_u32 s{S_WAVE}, 4")
    k(f"s_cbranch_scc1 {k.L('fin')}")
    k(f"v_and_b32 v{T + 5}, 15, v{L}")
    k(f"v_lshlrev_b32 v{T + 5}, 4, v{T + 5}")
    k(f"v_add_u32 v{T + 6}, s{S_T}, v{T + 5}")
    for n, off in enumerate((0, 256, 2048, 2304)):
        k(f"ds_read_b128 v[{PT + 4 * n}:{PT + 3 + 4 * n}], v{T + 6} offset:{off}")
    srd(k, S_A, S_WS, WS_ST2, 64 * 4096)
    k(f"s_lshl_b32 s{S_T + 3}, s{S_MT}, 12")
    k(f"s_lshl_b32 s{S_T + 4}, s{S_CB}, 8")
    k(f"s_add_u32 s{S_T + 3}, s{S_T + 3}, s{S_T + 4}")
    k("s_waitcnt lgkmcnt(0)")
    for n in (1, 2, 3):
        for h in (0, 2):
            k(f"v_pk_add_f32 v[{PT + h}:{PT + h + 1}], v[{PT + h}:{PT + h + 1}], v[{PT + 4 * n + h}:{PT + 4 * n + h + 1}]")
    k("s_mov_b64 exec, 0xffff")
    k(f"buffer_store_dwordx4 v[{PT}:{PT + 3}], v{T + 5}, s[{S_A}:{S_A + 3}], s{S_T + 3} offen sc1")
    k("s_mov_b64 exec, -1")
    k.label("fin")
    k.label("done")
    k("s_endpgm")

    k.label("slow")
    MX = T + 4
    for r in range(16):
        k(f"v_mov_b32 v{O + r}, 0")
    for r in range(4):
        k(f"v_mov_b32 v{LL + r}, 0")
    k(f"v_mov_b32 v{MX}, 0xff7fffff")
    k(f"s_mov_b32 s{S_OFF}, 0")
    k.label("slow1")
    k(f"buffer_load_dwordx4 v[{KF}:{KF + 3}], v{V_RB}, s[{S_KS}:{S_KS + 3}], s{S_OFF} offen")
    k(f"buffer_load_dwordx4 v[{KF + 4}:{KF + 7}], v{V_RB}, s[{S_KS}:{S_KS + 3}], s{S_OFF} offen offset:1024")
    k(f"buffer_load_dwordx4 v[{VF}:{VF + 3}], v{V_RB}, s[{S_VS}:{S_VS + 3}], s{S_OFF} offen")
    k(f"buffer_load_dwordx4 v[{VF + 4}:{VF + 7}], v{V_RB}, s[{S_VS}:{S_VS + 3}], s{S_OFF} offen offset:1024")
    k("s_waitcnt vmcnt(0)")
    k(f"{M32} {vr(S0, 16)}, {vr(KF, 4)}, {vr(Q, 4)}, 0")
    k(f"{M32} {vr(S0, 16)}, {vr(KF + 4, 4)}, {vr(Q + 4, 4)}, {vr(S0, 16)}")
    k("s_nop 7")
    k("s_nop 7")
    k(f"v_max3_f32 v{T}, v{S0}, v{S0 + 1}, v{MX}")
    for r in range(2, 16, 2):
        k(f"v_max3_f32 v{T}, v{T}, v{S0 + r}, v{S0 + r + 1}")
    k(f"v_mov_b32 v{T + 1}, v{T}")
    k("s_nop 1")
    k(f"v_permlane32_swap_b32 v{T}, v{T + 1}")
    k("s_nop 1")
    k(f"v_max_f32 v{T}, v{T}, v{T + 1}")
    k(f"v_sub_f32 v{T + 1}, v{MX}, v{T}")
    k(f"v_exp_f32 v{T + 1}, v{T + 1}")
    k(f"v_mov_b32 v{MX}, v{T}")
    for r in range(16):
        k(f"v_mul_f32 v{O + r}, v{O + r}, v{T + 1}")
    for r in range(4):
        k(f"v_mul_f32 v{LL + r}, v{LL + r}, v{T + 1}")
    for r in range(16):
        k(f"v_sub_f32 v{S0 + r}, v{S0 + r}, v{T}")
    ex(S0, 0, 16)
    k("s_nop 0")
    cv(S0, 0, 8)
    k("s_nop 1")
    k(f"{M32} {vr(O, 16)}, {vr(VF, 4)}, {vr(P, 4)}, {vr(O, 16)}")
    k(f"{M32} {vr(O, 16)}, {vr(VF + 4, 4)}, {vr(P + 4, 4)}, {vr(O, 16)}")
    k(f"{M16} {vr(LL, 4)}, {vr(SEL, 4)}, {vr(P, 4)}, {vr(LL, 4)}")
    k(f"{M16} {vr(LL, 4)}, {vr(SEL, 4)}, {vr(P + 4, 4)}, {vr(LL, 4)}")
    k(f"s_add_u32 s{S_OFF}, s{S_OFF}, 2048")
    k(f"s_cmp_lt_u32 s{S_OFF}, 131072")
    k("s_nop 7")
    k(f"s_cbranch_scc1 {k.L('slow1')}")
    k(f"s_mov_b32 s{S_CNT}, 1")
    k(f"s_branch {k.L('finish')}")

    k.label("loader")
    k("s_setprio 3")
    ls = Sim()

    def lo(items):
        for l in ls.emit(items):
            k(l)

    PFB, CSA, SEL2, V_GU, V_WD, V_CSA = 16, 80, 84, 4, 5, 6
    S_O1, S_O2, S_CSO, S_WOO, S_RP, S_CS = 44, 45, 46, 41, 16, 20
    S_W2 = 60

    def kv(s):
        it = []
        for which, sr in ((0, S_KS), (1, S_VS)):
            for g in range(2):
                for i in range(4):
                    pre = [f"s_mov_b32 m0, {(s % RL) * SLOT + which * 8192 + g * 4096}", f"s_mov_b32 s{S_OFF}, {s * 8192 + g * 4096}"] if i == 0 else []
                    it.append(VM(("KV", s, which, g, i), f"buffer_load_dwordx4 v{V_RB}, s[{sr}:{sr + 3}], s{S_OFF} offen offset:{i * 1024} lds", pre))
        return it

    lo([Item("bar")])
    lo(kv(2))
    k(f"""
    v_lshrrev_b32 v{T}, 3, v{V_LANE}
    v_and_b32 v{T + 1}, 7, v{V_LANE}
    v_mul_u32_u24 v{V_GU}, {F * 2}, v{T}
    v_lshl_add_u32 v{V_GU}, v{T + 1}, 4, v{V_GU}
    v_bfe_u32 v{T + 2}, v{V_LANE}, 4, 1
    v_lshlrev_b32 v{T + 2}, 2, v{T + 2}
    v_xor_b32 v{T + 2}, v{T + 1}, v{T + 2}
    v_lshlrev_b32 v{V_WD}, 11, v{T}
    v_lshl_add_u32 v{V_WD}, v{T + 2}, 4, v{V_WD}
    v_lshlrev_b32 v{V_CSA}, 5, v{T + 1}
    v_and_b32 v{T + 2}, 16, v{V_LANE}
    v_add_u32 v{V_CSA}, v{V_CSA}, v{T + 2}
    v_and_b32 v{T + 2}, 15, v{V_LANE}
    v_lshrrev_b32 v{T + 3}, 1, v{T + 2}
    v_and_b32 v{T + 2}, 1, v{T + 2}
    v_lshlrev_b32 v{T + 2}, 4, v{T + 2}
    v_mov_b32 v{T + 4}, 0x3f80
    v_lshlrev_b32 v{T + 2}, v{T + 2}, v{T + 4}
    """)
    for d in range(4):
        k(f"v_cmp_eq_u32 vcc, {d}, v{T + 3}")
        k("s_nop 1")
        k(f"v_cndmask_b32 v{SEL2 + d}, 0, v{T + 2}, vcc")
    srd(k, S_W2, S_WO, 0, D * D * 2)
    srd(k, S_CS, S_WS, WS_CSP, 16 * 2 * F * 4)
    k(f"s_lshl_b32 s{S_WOO}, s{S_CB}, 7")
    k(f"s_add_u32 s{S_T}, s{S_XCD}, 1")
    k(f"s_lshl_b32 s{S_T}, s{S_T}, 18")
    k(f"s_add_u32 s{S_WOO}, s{S_WOO}, s{S_T}")
    k(f"s_lshr_b32 s{S_T + 8 - 1}, s{S_XCD}, 2")
    k(f"s_lshl_b32 s{S_T + 7}, s{S_T + 7}, 5")
    k(f"s_add_u32 s{S_T + 7}, s{S_T + 7}, s{S_IDX}")
    k(f"s_mul_i32 s{S_T + 7}, s{S_T + 7}, 7")

    S_PS = 64
    S_CSOS = 68
    S_FL = 72

    def wo(rows8, ldsbase):
        it = []
        for n, r8 in enumerate(rows8):
            kh, i, sub = r8 >> 6, (r8 >> 2) & 15, r8 & 3
            pre = [f"s_mov_b32 m0, {ldsbase + n * 1024}", f"s_add_u32 s{S_O1}, s{S_WOO}, {(2 * i + kh) * 65536 + sub * 16384}",
                   f"s_and_b32 s{S_O1}, s{S_O1}, {D * D * 2 - 1}"]
            it.append(VM(("WO", r8), f"buffer_load_dwordx4 v{V_WD}, s[{S_W2}:{S_W2 + 3}], s{S_O1} offen lds", pre))
        return it

    def gu_loads(i):
        buf = PFB + 32 * (i % 2)
        t = S_T
        it = [T_(f"""s_add_u32 s{t}, s{S_T + 7}, {i}
s_lshr_b32 s{t + 1}, s{t}, 4
s_and_b32 s{t}, s{t}, 15
s_cmp_ge_u32 s{t + 1}, 14
s_cselect_b32 s{t + 2}, 14, 0
s_cselect_b32 s{t + 3}, {F}, 0
s_cselect_b32 s{S_PS}, s{S_WU}, s{S_WG}
s_cselect_b32 s{S_PS + 1}, s{S_WU + 1}, s{S_WG + 1}
s_mov_b32 s{S_PS + 2}, {D * F * 2}
s_mov_b32 s{S_PS + 3}, 0x20000
s_sub_u32 s{t + 1}, s{t + 1}, s{t + 2}
s_lshl_b32 s{t + 1}, s{t + 1}, 6
s_and_b32 s{t + 2}, s{S_XCD}, 3
s_mul_i32 s{t + 2}, s{t + 2}, 896
s_add_u32 s{t + 1}, s{t + 1}, s{t + 2}
s_mul_i32 s{S_O2}, s{t}, {64 * F * 2}
s_lshl_b32 s{t + 2}, s{t + 1}, 1
s_add_u32 s{S_O2}, s{S_O2}, s{t + 2}
s_mul_i32 s{S_CSOS + i % 2}, s{t}, {2 * F * 4}
s_add_u32 s{t + 1}, s{t + 1}, s{t + 3}
s_lshl_b32 s{t + 1}, s{t + 1}, 2
s_add_u32 s{S_CSOS + i % 2}, s{S_CSOS + i % 2}, s{t + 1}""")]
        for u in range(8):
            it.append(VM(("PF", i, u), f"buffer_load_dwordx4 v[{buf + 4 * u}:{buf + 4 * u + 3}], v{V_GU}, s[{S_PS}:{S_PS + 3}], s{S_O2} offen",
                         [f"s_add_u32 s{S_O2}, s{S_O2}, {8 * F * 2}"] if u else []))
        return it

    def gu_sum(i):
        buf = PFB + 32 * (i % 2)
        it = [NEEDV(("PF", i, 7))]
        for u in range(8):
            it.append(T_(f"{M16} {vr(CSA, 4)}, {vr(SEL2, 4)}, {vr(buf + 4 * u, 4)}, {'0' if u == 0 else vr(CSA, 4)}"))
        it.append(T_("s_nop 7"))
        for d in range(4):
            it.append(T_(f"v_add_f32_dpp v{T + 4 + d}, v{CSA + d}, v{CSA + d} row_ror:8 row_mask:0xf bank_mask:0xf"))
        it.append(VM(("CSS", i), f"s_mov_b32 exec_lo, 0x00ff00ff\ns_mov_b32 exec_hi, 0\nbuffer_store_dwordx4 v[{T + 4}:{T + 7}], v{V_CSA}, s[{S_CS}:{S_CS + 3}], s{S_CSOS + i % 2} offen sc1\ns_mov_b64 exec, -1"))
        return it

    def wd_loads(i):
        j = i - 7
        buf = PFB + 32 * (i % 2)
        it = []
        if j == 0:
            it.append(T_("\n".join(srd_lines(S_PS, S_WD, 0, F * D * 2) + [
                f"s_lshr_b32 s{S_T}, s2, 4", f"s_mul_i32 s{S_O2}, s{S_T}, {28 * 16384}", f"s_and_b32 s{S_T + 1}, s2, 15",
                f"s_lshl_b32 s{S_T + 2}, s{S_T + 1}, 7", f"s_add_u32 s{S_O2}, s{S_O2}, s{S_T + 2}",
                f"s_mul_i32 s{S_CSO}, s{S_T + 1}, {F * 128}", f"s_mul_i32 s{S_T}, s{S_T}, {28 * 1024}", f"s_add_u32 s{S_CSO}, s{S_CSO}, s{S_T}"]
                + srd_lines(S_RP, S_WS, WS_WD2, 16 * F * 128))))
        for u in range(7):
            it.append(VM(("PF", i, u), f"buffer_load_dwordx4 v[{buf + 4 * u}:{buf + 4 * u + 3}], v{V_WD}, s[{S_PS}:{S_PS + 3}], s{S_O2} offen",
                         [f"s_add_u32 s{S_O2}, s{S_O2}, 16384"] if (u or j) else []))
        return it

    def wd_stores(i):
        j = i - 7
        buf = PFB + 32 * (i % 2)
        it = [NEEDV(("PF", i, 6))]
        for u in range(7):
            it.append(VM(("RPS", i, u), f"buffer_store_dwordx4 v[{buf + 4 * u}:{buf + 4 * u + 3}], v{V_RB}, s[{S_RP}:{S_RP + 3}], s{S_CSO} offen sc1",
                         [f"s_add_u32 s{S_CSO}, s{S_CSO}, 1024"] if (u or j) else []))
        return it

    for s in range(16):
        lo(([NEEDV(("KV", s + 1))] if 1 < s + 1 < 16 else []) + [Item("bar")])
        it = []
        if s + 3 < 16:
            it += kv(s + 3)
        if 0 <= s - 2 <= 6:
            it += gu_sum(s - 2)
        elif 7 <= s - 2 <= 10:
            it += wd_stores(s - 2)
        if s <= 6:
            it += gu_loads(s)
        elif s <= 10:
            it += wd_loads(s)
        if s < 12:
            it += wo(range(8 * s, 8 * s + 8), WOB + s * 8192)
        if s == 13:
            it += wo(range(96, 112), 0)
        if s == 14:
            it += wo(range(112, 128), 16384)
        if s == 10:
            it += [T_(l) for l in srd_lines(S_FL, S_WS, WS_FLG2, 3 * 256 * 128)]
            it += [T_(f"v_mov_b32 v{T + 1}, 1"), T_(f"v_mov_b32 v{T + 2}, 0"), T_(f"s_lshl_b32 s{S_O1}, s2, 7"), T_(f"s_add_u32 s{S_O1}, s{S_O1}, 65536"),
                   NEEDV(("CSS", 6)),
                   VM(("CSF",), f"s_mov_b64 exec, 1\nbuffer_store_dword v{T + 1}, v{T + 2}, s[{S_FL}:{S_FL + 3}], s{S_O1} offen sc1\ns_mov_b64 exec, -1")]
        C = 88
        if s == 12:
            csp = f"buffer_load_dword v{C}, v{T + 3}, s[{S_FL}:{S_FL + 3}], s{S_O2} offen sc1"
            pre_cs = [f"v_and_b32 v{T + 3}, 31, v{V_LANE}", f"v_lshlrev_b32 v{T + 3}, 10, v{T + 3}", f"v_lshrrev_b32 v{T + 4}, 5, v{V_LANE}",
                      f"v_lshl_add_u32 v{T + 3}, v{T + 4}, 9, v{T + 3}", f"s_bfe_u32 s{S_O2}, s2, {5 | (2 << 16)}", f"s_lshl_b32 s{S_O2}, s{S_O2}, 7",
                      f"s_add_u32 s{S_O2}, s{S_O2}, 65536"]
            it += [T_(l) for l in pre_cs] + [VM(("CSP",), csp)]
        if s == 13:
            for l in spin(k, "spincs", [csp], [f"v_cmp_eq_u32 vcc, 1, v{C}", "s_nop 1", "s_cmp_eq_u64 vcc, -1"], S_T + 6):
                k(l)
            i2 = [T_(l) for l in [f"v_lshrrev_b32 v{T + 4}, 5, v{V_LANE}", f"v_mul_u32_u24 v{T + 4}, {8 * 2 * F * 4}, v{T + 4}", f"v_and_b32 v{T + 5}, 31, v{V_LANE}",
                                  f"v_lshl_add_u32 v{T + 4}, v{T + 5}, 2, v{T + 4}", f"s_mul_i32 s{S_O2}, s2, 112"]]
            for n in range(8):
                i2.append(VM(("CSL", n), f"buffer_load_dword v{C + n}, v{T + 4}, s[{S_CS}:{S_CS + 3}], s{S_O2} offen sc1",
                             [f"s_add_u32 s{S_O2}, s{S_O2}, {2 * F * 4}"] if n else []))
            it = i2 + it
        if s == 14:
            it += [T_(l) for l in [f"s_and_b32 s{S_T + 2}, s2, 3", f"s_mul_i32 s{S_T + 2}, s{S_T + 2}, 28", f"v_add_u32 v{T + 5}, s{S_T + 2}, v{T + 5}",
                      f"v_lshrrev_b32 v{T + 6}, 4, v{T + 5}", f"v_lshlrev_b32 v{T + 6}, 9, v{T + 6}", f"v_and_b32 v{T + 5}, 15, v{T + 5}",
                      f"v_lshl_add_u32 v{T + 5}, v{T + 5}, 4, v{T + 6}", f"s_bfe_u32 s{S_T + 2}, s2, {2 | (5 << 16)}", f"s_mul_i32 s{S_T + 2}, s{S_T + 2}, 3584",
                      f"s_lshr_b32 s{S_T + 3}, s2, 7", f"s_lshl_b32 s{S_T + 3}, s{S_T + 3}, 8", f"s_add_u32 s{S_T + 2}, s{S_T + 2}, s{S_T + 3}"] +
                     srd_lines(S_RP, S_WS, WS_AUG, 32 * 3584)] + [NEEDV(("CSL", 7))]
            it += [T_(l) for l in [f"v_add_f32 v{C}, v{C}, v{C + n}" for n in range(1, 8)] +
                     [f"v_mov_b32 v{C + 1}, v{C}", "s_nop 1", f"v_permlane32_swap_b32 v{C}, v{C + 1}", "s_nop 1", f"v_add_f32 v{C}, v{C}, v{C + 1}"] +
                     cs_split(C, C + 1, C + 4, S_MASK)]
            it.append(VM(("AUGS",), f"s_mov_b64 exec, 0x0fffffff\nbuffer_store_dwordx4 v[{C + 4}:{C + 7}], v{T + 5}, s[{S_RP}:{S_RP + 3}], s{S_T + 2} offen sc1\ns_mov_b64 exec, -1"))
        if s == 11 and nk:
            it += [T_(l) for l in code_srd(92, nk, nk_end)] + [T_(f"v_lshlrev_b32 v{T}, 7, v{V_LANE}")]
            for n in range(5):
                it.append(VM(("PFC", n), f"buffer_load_dword v{T + 7}, v{T}, s[92:95], s{S_O1} offen", [f"s_mov_b32 s{S_O1}, {n * 8192}"]))
        lo(it)
    FP = PFB + 8
    k(f"v_bfe_u32 v{T + 3}, v{V_LANE}, 2, 3")
    k(f"v_lshlrev_b32 v{T}, 7, v{T + 3}")
    k(f"v_and_b32 v{T + 4}, 3, v{V_LANE}")
    k(f"v_lshl_add_u32 v{T}, v{T + 4}, 2, v{T}")
    k(f"v_cmp_eq_u32 s[{S_CSOS}:{S_CSOS + 1}], s{S_XCD}, v{T + 3}")
    k(f"s_lshr_b32 s{S_O2}, s{S_RB}, 1")
    k(f"s_lshl_b32 s{S_O2}, s{S_O2}, 10")
    k(f"s_and_b32 s{S_O1}, s{S_IDX}, 7")
    k(f"s_lshl_b32 s{S_O1}, s{S_O1}, 3")
    k(f"s_add_u32 s{S_O1}, s{S_O1}, s{S_XCD}")
    k(f"s_lshl_b32 s{S_O1}, s{S_O1}, 7")
    k(f"s_lshr_b32 s{S_T}, s{S_IDX}, 3")
    k(f"s_lshl_b32 s{S_T}, s{S_T}, 2")
    k(f"s_add_u32 s{S_O1}, s{S_O1}, s{S_T}")
    S_PS = S_FL
    pl = [f"buffer_load_dword v{FP}, v{T}, s[{S_FL}:{S_FL + 3}], s{S_O2} offen sc1"]
    red = [f"v_cmp_eq_u32 vcc, 1, v{FP}", "s_nop 1"]
    k(f"s_mov_b32 s{S_T + 6}, 2")
    k.label("early")
    for l in pl + ["s_waitcnt vmcnt(0)"] + red + [f"s_or_b64 vcc, vcc, s[{S_CSOS}:{S_CSOS + 1}]", "s_cmp_eq_u64 vcc, -1", f"s_cbranch_scc1 {k.L('early_ok')}",
                                                  f"s_sub_u32 s{S_T + 6}, s{S_T + 6}, 1", f"s_cmp_lg_u32 s{S_T + 6}, 0", f"s_cbranch_scc1 {k.L('early')}"]:
        k(l)
    k.label("early_ok")
    k("s_barrier")
    k("s_mov_b64 exec, 1")
    k(f"buffer_store_dword v{T + 1}, v{T + 2}, s[{S_PS}:{S_PS + 3}], s{S_O1} offen sc1")
    k("s_mov_b64 exec, -1")
    k(f"s_cmp_lg_u32 s{S_T + 6}, 0")
    k(f"s_cbranch_scc1 {k.L('spin_ok')}")
    for l in pl + spin(k, "spin", pl, red + [f"s_or_b64 vcc, vcc, s[{S_CSOS}:{S_CSOS + 1}]", "s_cmp_eq_u64 vcc, -1"], S_T + 6):
        k(l)
    k("s_barrier")
    for l in pl + spin(k, "spin2", pl, red + ["s_cmp_eq_u64 vcc, -1"], S_T + 6):
        k(l)
    k("s_barrier")
    k("s_endpgm")
    return k


def T_(txt):
    return Item("txt", txt)
```

```python
import sys, math

S, D, H, DH, F = 2048, 1024, 32, 32, 3584
MB = 1 << 20
WS_XN = 0
WS_Q = 4 * MB
WS_K = 8 * MB
WS_V = 12 * MB
WS_O = 16 * MB
WS_H = 20 * MB
WS_HN = 24 * MB
WS_ACT = 28 * MB
WS_CSP = 44 * MB
WS_AUG = 45 * MB
WS_ST2 = 46 * MB
WS_ST1 = 47 * MB
WS_CS1 = 48 * MB
WS_WD2 = 50 * MB
WS_FLG = 49 * MB
WS_FLG2 = WS_FLG + 32768
WS_FLG3 = WS_FLG + 65536
WS_FLG4 = WS_FLG + 98304
KA_X, KA_WQKV, KA_WO, KA_BX, KA_WG, KA_WU, KA_WD, KA_OUT, KA_DBG, KA_WS = [8 * i for i in range(10)]

LOG2E = 1.4426950408889634
import os
STAMP = bool(os.environ.get('STAMP'))
STAMP_IDX = {}


def f32bits(x):
    import struct
    return struct.unpack("<I", struct.pack("<f", x))[0]


class K:
    def __init__(self, name, grid, block, lds, nvgpr, nagpr=0, nsgpr=96):
        self.name, self.grid, self.block, self.lds = name, grid, block, lds
        self.nvgpr, self.nagpr, self.nsgpr = nvgpr, nagpr, nsgpr
        self.lines = []

    def __call__(self, s):
        for l in s.split("\n"):
            l = l.strip()
            if l:
                self.lines.append(l if l.endswith(":") else "    " + l)

    def label(self, l):
        self.lines.append(f"{self.name}_{l}:")

    def L(self, l):
        return f"{self.name}_{l}"

    def text(self):
        lines = list(self.lines)
        if STAMP:
            idx = self.idx
            pre = ["    s_memtime s[80:81]", "    s_memrealtime s[82:83]", "    s_load_dwordx2 s[88:89], s[0:1], 72", "    s_mov_b32 s90, s2",
                   "    v_lshrrev_b32 v1, 6, v0", "    s_nop 1", "    v_readfirstlane_b32 s91, v1", "    s_waitcnt lgkmcnt(0)"]
            post = ["    s_waitcnt vmcnt(0) lgkmcnt(0)", "    s_memtime s[84:85]", "    s_memrealtime s[86:87]", "    s_waitcnt lgkmcnt(0)",
                    "    s_lshl_b32 s90, s90, 3", "    s_add_u32 s90, s90, s91", "    s_lshl_b32 s90, s90, 6",
                    f"    s_add_u32 s90, s90, {64 * MB + idx * 262144}", "    s_add_u32 s88, s88, s90", "    s_addc_u32 s89, s89, 0",
                    "    v_mov_b32 v0, 0"]
            for i in range(8):
                post.append(f"    v_mov_b32 v1, s{80 + i}")
                post.append(f"    global_store_dword v0, v1, s[88:89] offset:{4 * i}")
            for i in range(8):
                post.append(f"    v_mov_b32 v1, s{60 + 2 * i}")
                post.append(f"    global_store_dword v0, v1, s[88:89] offset:{32 + 4 * i}")
            post.append("    s_waitcnt vmcnt(0)")
            j = lines.index(f"{self.name}_done:")
            lines = pre + lines[:j] + post + lines[j:]
        lines = [l for l in lines if STAMP or "STAMP" not in l]
        return (f".globl {self.name}\n.p2align 8\n.type {self.name},@function\n{self.name}:\n{self.name}_beg:\n"
                + "\n".join(lines) + f"\n{self.name}_end:\n")

    def stamp(self, i):
        self.lines.append(f"    s_memtime s[{60 + 2 * i}:{61 + 2 * i}]  ; STAMP")
        self.lines.append(f"    s_waitcnt lgkmcnt(0)  ; STAMP")

    def desc(self):
        acc = (self.nvgpr + 3) // 4 * 4
        nfv = acc + self.nagpr if self.nagpr else self.nvgpr
        return f""".p2align 6
.amdhsa_kernel {self.name}
  .amdhsa_next_free_vgpr {nfv}
  .amdhsa_next_free_sgpr {self.nsgpr}
  .amdhsa_accum_offset {acc}
  .amdhsa_group_segment_fixed_size 0
  .amdhsa_kernarg_size 80
  .amdhsa_user_sgpr_count 2
  .amdhsa_user_sgpr_kernarg_segment_ptr 1
  .amdhsa_system_sgpr_workgroup_id_x 1
.end_amdhsa_kernel
"""

    def launch(self):
        return f"; @launch kernel={self.name} grid=({self.grid},1,1) block=({self.block},1,1) lds={self.lds}"


_pcn = [0]


def code_srd(dst, start, end, back=False):
    _pcn[0] += 1
    l = f".Lpc{_pcn[0]}"
    if back:
        return [f"s_getpc_b64 s[{dst}:{dst + 1}]\n{l}:\ns_sub_u32 s{dst}, s{dst}, {l}-{start}\ns_subb_u32 s{dst + 1}, s{dst + 1}, 0",
                f"s_mov_b32 s{dst + 2}, {end}-{start}", f"s_mov_b32 s{dst + 3}, 0x20000"]
    return [f"s_getpc_b64 s[{dst}:{dst + 1}]\n{l}:\ns_add_u32 s{dst}, s{dst}, {start}-{l}\ns_addc_u32 s{dst + 1}, s{dst + 1}, 0",
            f"s_mov_b32 s{dst + 2}, {end}-{start}", f"s_mov_b32 s{dst + 3}, 0x20000"]


def vr(b, n=1, f="v"):
    return f"{f}{b}" if n == 1 else f"{f}[{b}:{b + n - 1}]"


def srd(k, dst, ptr, off, nbytes, off_sgpr=None):
    if off:
        k(f"s_add_u32 s{dst}, s{ptr}, {off}")
        k(f"s_addc_u32 s{dst + 1}, s{ptr + 1}, 0")
    else:
        k(f"s_mov_b32 s{dst}, s{ptr}")
        k(f"s_mov_b32 s{dst + 1}, s{ptr + 1}")
    if off_sgpr is not None:
        k(f"s_add_u32 s{dst}, s{dst}, s{off_sgpr}")
        k(f"s_addc_u32 s{dst + 1}, s{dst + 1}, 0")
    k(f"s_mov_b32 s{dst + 2}, {nbytes}")
    k(f"s_mov_b32 s{dst + 3}, 0x20000")


def gen_ln(name, first):
    k = K(name, 256, 256, 256, 80)
    k(f"""
    s_load_dwordx2 s[4:5], s[0:1], {KA_X}
    s_load_dwordx2 s[6:7], s[0:1], {KA_WS}
    s_cmp_ge_u32 s2, 256
    s_cbranch_scc1 {k.L('done')}
    v_and_b32 v1, 7, v0               ; r8
    v_lshrrev_b32 v2, 6, v0           ; wave
    v_bfe_u32 v3, v0, 3, 3            ; lane>>3
    v_lshl_add_u32 v3, v2, 5, v3
    s_lshr_b32 s8, s2, 2              ; mt
    s_lshl_b32 s8, s8, 16
    s_and_b32 s9, s2, 3
    s_lshl_b32 s9, s9, 7              ; (b&3)*8*16
    s_add_u32 s8, s8, s9
    v_lshrrev_b32 v4, 1, v3
    v_lshlrev_b32 v4, 10, v4
    v_and_b32 v5, 1, v3
    v_lshl_add_u32 v4, v5, 9, v4
    v_lshl_add_u32 v4, v1, 4, v4
    v_add_u32 v4, s8, v4
    s_mov_b32 s20, 4096
    s_mov_b32 s21, 8192
    s_mov_b32 s22, 12288
    s_waitcnt lgkmcnt(0)
    """)
    if first:
        srd(k, 12, 4, 0, S * D * 2)
        srd(k, 16, 6, WS_XN, S * D * 2)
        k(f"""
        s_lshl_b32 s10, s2, 14            ; b*8 rows*2048
        v_lshlrev_b32 v5, 11, v1
        v_lshl_add_u32 v5, v3, 4, v5
        v_add_u32 v5, s10, v5
        """)
        for i in range(4):
            k(f"buffer_load_dwordx4 v[{8 + 4 * i}:{11 + 4 * i}], v5, s[12:15], 0 offen offset:{128 * i}")
    else:
        srd(k, 12, 6, WS_H, S * D * 2)
        srd(k, 16, 6, WS_HN, S * D * 2)
        for i in range(4):
            so = ["0", "s20", "s21", "s22"][i]
            k(f"buffer_load_dwordx4 v[{8 + 4 * i}:{11 + 4 * i}], v4, s[12:15], {so} offen")
    k("v_mov_b32 v6, 0")
    k("v_mov_b32 v7, 0")
    k("s_mov_b32 s23, 0xffff0000")
    for i in range(4):
        k(f"s_waitcnt vmcnt({3 - i})")
        for d in range(4):
            src = 8 + 4 * i + d
            lo, hi = 32 + 8 * i + 2 * d, 33 + 8 * i + 2 * d
            k(f"v_lshlrev_b32 v{lo}, 16, v{src}")
            k(f"v_and_b32 v{hi}, s23, v{src}")
            k(f"v_add_f32 v6, v6, v{lo}")
            k(f"v_fmac_f32 v7, v{lo}, v{lo}")
            k(f"v_add_f32 v6, v6, v{hi}")
            k(f"v_fmac_f32 v7, v{hi}, v{hi}")
    k("""
    s_nop 1
    v_add_f32_dpp v6, v6, v6 row_ror:8 row_mask:0xf bank_mask:0xf
    v_add_f32_dpp v7, v7, v7 row_ror:8 row_mask:0xf bank_mask:0xf
    s_nop 1
    v_mov_b32 v24, v6
    v_mov_b32 v25, v7
    s_nop 1
    v_permlane16_swap_b32 v6, v24
    v_permlane16_swap_b32 v7, v25
    s_nop 1
    v_add_f32 v6, v6, v24
    v_add_f32 v7, v7, v25
    s_nop 0
    v_mov_b32 v24, v6
    v_mov_b32 v25, v7
    s_nop 1
    v_permlane32_swap_b32 v6, v24
    v_permlane32_swap_b32 v7, v25
    s_nop 1
    v_add_f32 v6, v6, v24
    v_add_f32 v7, v7, v25
    v_lshlrev_b32 v26, 5, v1
    v_lshl_add_u32 v27, v2, 3, v26
    ds_write_b64 v27, v[6:7]
    s_waitcnt lgkmcnt(0)
    s_barrier
    ds_read_b128 v[64:67], v26
    ds_read_b128 v[68:71], v26 offset:16
    s_waitcnt lgkmcnt(0)
    v_add_f32 v6, v64, v66
    v_add_f32 v7, v65, v67
    v_add_f32 v24, v68, v70
    v_add_f32 v25, v69, v71
    v_add_f32 v6, v6, v24
    v_add_f32 v7, v7, v25
    v_mul_f32 v6, 0x3a800000, v6       ; mean
    v_mul_f32 v7, 0x3a800000, v7       ; E[x^2]
    v_fma_f32 v7, -v6, v6, v7          ; var
    v_max_f32 v7, 0, v7
    v_cvt_pk_bf16_f32 v24, v6, v7
    v_lshlrev_b32 v6, 16, v24          ; mean_bf
    v_and_b32 v7, s23, v24             ; var_bf
    v_add_f32 v7, 0x3727c5ac, v7       ; + 1e-5
    v_cvt_pk_bf16_f32 v24, v7, v7
    v_and_b32 v7, s23, v24
    v_sqrt_f32 v7, v7
    s_nop 0
    v_cvt_pk_bf16_f32 v24, v7, v7
    v_and_b32 v7, s23, v24
    v_rcp_f32 v7, v7
    s_nop 0
    """)
    for i in range(4):
        for d in range(4):
            lo, hi = 32 + 8 * i + 2 * d, 33 + 8 * i + 2 * d
            dst = 8 + 4 * i + d
            k(f"v_sub_f32 v{lo}, v{lo}, v6")
            k(f"v_sub_f32 v{hi}, v{hi}, v6")
            k(f"v_cvt_pk_bf16_f32 v24, v{lo}, v{hi}")
            k(f"v_lshlrev_b32 v{lo}, 16, v24")
            k(f"v_and_b32 v{hi}, s23, v24")
            k(f"v_mul_f32 v{lo}, v{lo}, v7")
            k(f"v_mul_f32 v{hi}, v{hi}, v7")
            k(f"v_cvt_pk_bf16_f32 v{dst}, v{lo}, v{hi}")
        so = ["0", "s20", "s21", "s22"][i]
        k(f"buffer_store_dwordx4 v[{8 + 4 * i}:{11 + 4 * i}], v4, s[16:19], {so} offen")
    k.label("done")
    k("s_endpgm")
    return k


def cfg(**kw):
    c = GemmCfg()
    c.__dict__.update(kw)
    return c


def build(kernels, path):
    hdr = open("sequential_preLN__mha_block__glu_gated_glu__prompt.s.ref").read().split("\n")
    hdr = [l for l in hdr if l.startswith(";") and "@launch" not in l and "Override" not in l and "grid=ceil" not in l]
    out = "\n".join(hdr) + "\n" + "\n".join(k.launch() for k in kernels) + "\n"
    out += '.amdgcn_target "amdgcn-amd-amdhsa--gfx950"\n.text\n'
    seen = []
    for k in kernels:
        if k.name not in seen:
            k.idx = len(seen)
            out += k.text()
            seen.append(k.name)
    out += '.section .rodata,"a"\n'
    seen = []
    for k in kernels:
        if k.name not in seen:
            out += k.desc()
            seen.append(k.name)
    open(path, "w").write(out)


class GemmCfg:
    pass
```

```python
import sys
from gen_common import *
from gen_gemm import gen_gemm
from gen_attn2 import gen_attn
from gen_mlp import gen_mlp
ks = [
    gen_gemm(cfg(name="qkv_kernel", kind="qkv", MT=1, NT=6, BK=64, K=D, DW=1, RA=2, a_off=WS_XN, kperm=False, code_end="down_kernel_end", nxt="attn_kernel_beg", nxt_end="attn_kernel_end")),
    gen_attn("attn_kernel", "mlp_kernel_beg", "mlp_kernel_end"),
    gen_mlp("mlp_kernel"),
]
build(ks, sys.argv[1] if len(sys.argv) > 1 else "sequential_preLN__mha_block__glu_gated_glu__prompt.s")
```
